```python
import torch

def _softmax(x, axis=-1):
    return torch.softmax(x, dim=axis)
def _gelu(x):
    return torch.nn.functional.gelu(x, approximate="tanh")
def _silu(x):
    return torch.nn.functional.silu(x)
def _sigmoid(x):
    return torch.sigmoid(x)
def _layernorm(x, axis=-1, eps=1e-5):
    m = x.mean(dim=axis, keepdim=True)
    v = x.var(dim=axis, keepdim=True, unbiased=False)
    return (x - m) / torch.sqrt(v + eps)
def _scatter_add(tgt, idx, src, axis=0):
    return tgt.clone().index_add_(axis, idx, src)
def _segment_sum(src, seg, n):
    out = torch.zeros((n,) + src.shape[1:], dtype=src.dtype)
    return out.index_add_(0, seg, src)
def _pad(x, pw):
    flat = tuple(v for pair in reversed(pw) for v in pair)
    return torch.nn.functional.pad(x, flat)

kernel_name = 'sequential_preLN__compressed_kv_cla__dense_activation_gelu__prompt'

def setup_inputs():

    _w = (lambda a: (lambda t: t.to(torch.bfloat16) if t.is_floating_point() else t)(torch.as_tensor(a)))
    def _A_setup():
        B, H, Sq, Sk, D, M = 1, 32, 2048, 2048, 128, 640
        Dc = 4 * D
        return {
            "x": _w((lambda *s: torch.randn(*s, dtype=torch.bfloat16) * 0.05)(B, Sq, M)),
            "c_kv": _w((lambda *s: torch.randn(*s, dtype=torch.bfloat16) * 0.4)(B, Sk, Dc)),
            "w_q": _w((lambda *s: torch.randn(*s, dtype=torch.bfloat16) * 1.6)(M, H, D) * (M ** -0.5)),
            "w_uk": _w((lambda *s: torch.randn(*s, dtype=torch.bfloat16) * 1.6)(Dc, H, D) * (Dc ** -0.5)),
            "w_uv": _w((lambda *s: torch.randn(*s, dtype=torch.bfloat16) * 0.4)(Dc, H, D) * (Dc ** -0.5)),
            "w_o": _w((lambda *s: torch.randn(*s, dtype=torch.bfloat16) * 0.4)(H, D, M) * ((H * D) ** -0.5)),
        }
    _A_in = _A_setup()

    def _B_setup():
        B, S, D, F = 1, 2048, 640, 1728
        return {
            "x": _w((lambda *s: torch.randn(*s, dtype=torch.bfloat16) * 0.05)(B, S, D)),
            "w1": _w((lambda *s: torch.randn(*s, dtype=torch.bfloat16) * 0.8)(D, F) * (D ** -0.5)),
            "b1": _w((lambda *s: torch.randn(*s, dtype=torch.bfloat16) * 12.8)(F) * 0.01),
            "w2": _w((lambda *s: torch.randn(*s, dtype=torch.bfloat16) * 0.2)(F, D) * (F ** -0.5)),
            "b2": _w((lambda *s: torch.randn(*s, dtype=torch.bfloat16) * 3.2)(D) * 0.01),
        }
    _B_in = _B_setup()

    return {
        "A_x": _A_in["x"],
        "A_c_kv": _A_in["c_kv"],
        "A_w_q": _A_in["w_q"],
        "A_w_uk": _A_in["w_uk"],
        "A_w_uv": _A_in["w_uv"],
        "A_w_o": _A_in["w_o"],
        "B_x": _B_in["x"],
        "B_w1": _B_in["w1"],
        "B_b1": _B_in["b1"],
        "B_w2": _B_in["w2"],
        "B_b2": _B_in["b2"],
    }

def reference(A_x, A_c_kv, A_w_q, A_w_uk, A_w_uv, A_w_o, B_x, B_w1, B_b1, B_w2, B_b2):
    def _A_ref(x, c_kv, w_q, w_uk, w_uv, w_o):
        B, Sq, M = x.shape[0], x.shape[1], x.shape[2]
        Sk = c_kv.shape[1]
        H, D = w_q.shape[1], w_q.shape[2]
        q = torch.einsum("bqm,mhd->bhqd", x, w_q)
        k = torch.einsum("bkc,chd->bhkd", c_kv, w_uk)
        v = torch.einsum("bkc,chd->bhkd", c_kv, w_uv)
        scores = torch.einsum("bhqd,bhkd->bhqk", q, k) * (D ** -0.5)
        off = Sk - Sq
        qi = torch.arange(Sq)[:, None]
        kj = torch.arange(Sk)[None, :]
        cmask = kj <= (qi + off)
        scores = torch.where(cmask[None, None], scores, -1e9)
        p = _softmax(scores, axis=-1)
        ctx = torch.einsum("bhqk,bhkd->bhqd", p, v)
        return torch.einsum("bhqd,hdm->bqm", ctx, w_o)

    def _B_ref(x, w1, b1, w2, b2):
        h = torch.einsum("bsd,df->bsf", x, w1) + b1
        h = _gelu(h)
        return torch.einsum("bsf,fd->bsd", h, w2) + b2

    x = A_x
    h = x + _A_ref(_layernorm(x, axis=-1), A_c_kv, A_w_q, A_w_uk, A_w_uv, A_w_o)
    h2 = h + _B_ref(_layernorm(h, axis=-1), B_w1, B_b1, B_w2, B_b2)
    return h2
```

```python
import re

REG_RE = re.compile(r'^(-|\|)?(abs\()?([vas])(\d+)\)?\|?$')
RNG_RE = re.compile(r'^(-)?([vas])\[(\d+):(\d+)\]$')

def parse_reg(tok):
    tok = tok.strip()
    m = RNG_RE.match(tok)
    if m:
        k, a, b = m.group(2), int(m.group(3)), int(m.group(4))
        return [(k, i) for i in range(a, b + 1)]
    m = REG_RE.match(tok)
    if m:
        return [(m.group(3), int(m.group(4)))]
    if tok == 'vcc':
        return [('x', 'vcc')]
    if tok == 'exec':
        return [('x', 'exec')]
    if tok == 'm0':
        return [('x', 'm0')]
    return []

TRANS = ('v_exp_f32', 'v_log_f32', 'v_rcp_f32', 'v_rsq_f32', 'v_sqrt_f32', 'v_sin_f32', 'v_cos_f32')

class Ins:
    __slots__ = ('text', 'op', 'kind', 'dst', 'src', 'srcC', 'passes', 'nops', 'label', 'target', 'is_store_wide', 'lds_dma')
    def __init__(self, text):
        self.text = text
        self.dst = []; self.src = []; self.srcC = []
        self.passes = 0; self.nops = 1; self.label = None; self.target = None
        self.is_store_wide = False; self.lds_dma = False
        t = text.split(';')[0].strip()
        if not t:
            self.kind = 'none'; self.op = ''; self.nops = 0; return
        if t.endswith(':'):
            self.kind = 'label'; self.op = ''; self.label = t[:-1]; self.nops = 0; return
        if t.startswith('.'):
            self.kind = 'dir'; self.op = t; self.nops = 0; return
        parts = t.split(None, 1)
        op = parts[0]; self.op = op
        rest = parts[1] if len(parts) > 1 else ''
        ops = []; cur = ''; depth = 0
        for ch in rest:
            if ch == '[': depth += 1
            if ch == ']': depth -= 1
            if ch == ',' and depth == 0:
                ops.append(cur.strip()); cur = ''
            else:
                cur += ch
        if cur.strip(): ops.append(cur.strip())
        mods = []
        if ops:
            sp = ops[-1].split()
            ops[-1] = sp[0] if sp else ''
            mods = sp[1:]
        R = [parse_reg(o) for o in ops]
        if op.startswith('v_mfma'):
            self.kind = 'mfma'
            self.passes = 8 if '32x32' in op else 4
            self.dst = R[0]; self.src = R[1] + R[2]; self.srcC = R[3]
        elif op.startswith('v_'):
            self.kind = 'trans' if op.replace('_e32', '').replace('_e64', '') in TRANS else 'valu'
            base = op
            if base.startswith('v_cmp'):
                self.dst = R[0]; self.src = sum(R[1:], [])
                if base.startswith('v_cmpx'): self.dst = self.dst + [('x', 'exec')]
            elif base.startswith('v_permlane32_swap') or base.startswith('v_permlane16_swap'):
                self.kind = 'permlane'
                self.dst = R[0] + R[1]; self.src = R[0] + R[1]
            elif base.startswith('v_add_co') or base.startswith('v_sub_co') or base.startswith('v_addc_co') or base.startswith('v_subb_co'):
                self.dst = R[0] + R[1]; self.src = sum(R[2:], [])
            elif base.startswith('v_readfirstlane') or base.startswith('v_readlane'):
                self.kind = 'readlane'
                self.dst = R[0]; self.src = sum(R[1:], [])
            else:
                self.dst = R[0]; self.src = sum(R[1:], [])
                if base.startswith('v_fmac') or base.startswith('v_mac') or base.startswith('v_pk_fmac') or base.startswith('v_dot2c'):
                    self.src = self.src + R[0]
                if base.startswith('v_cndmask') and len(ops) == 3:
                    self.src = self.src + [('x', 'vcc')]
            if any(m.startswith('row_') or m.startswith('quad_perm') or m.startswith('wave_') or m.startswith('row') for m in mods):
                self.kind = 'dpp'
        elif op.startswith('ds_'):
            self.kind = 'ds'
            if op.startswith('ds_read') or op.startswith('ds_bpermute') or op.startswith('ds_permute') or op.startswith('ds_swizzle'):
                self.dst = R[0]; self.src = sum(R[1:], [])
            else:
                self.src = sum(R, [])
        elif op.startswith('buffer_') or op.startswith('global_'):
            self.kind = 'vmem'
            if 'lds' in mods or op.startswith('global_load_lds'):
                self.lds_dma = True
                self.src = sum(R, []) + [('x', 'm0')]
            elif 'load' in op:
                self.dst = R[0]; self.src = sum(R[1:], [])
            else:
                self.src = sum(R, [])
                if op.endswith('x4') or op.endswith('x3'):
                    self.is_store_wide = True
                    self.srcC = R[0] if op.startswith('buffer_') else R[1]
        elif op.startswith('s_'):
            self.kind = 'salu'
            if op == 's_nop':
                self.nops = int(ops[0], 0) + 1
            elif op.startswith('s_cbranch') or op == 's_branch':
                self.kind = 'branch'; self.target = ops[0]
            elif op in ('s_waitcnt', 's_barrier', 's_endpgm', 's_setprio', 's_sleep'):
                pass
            elif op.startswith('s_cmp') or op.startswith('s_bitcmp'):
                self.src = sum(R, [])
            elif 'saveexec' in op:
                self.dst = R[0] + [('x', 'exec')]; self.src = sum(R[1:], [])
            else:
                self.dst = R[0] if R else []; self.src = sum(R[1:], [])
        else:
            raise ValueError('unknown instruction: ' + text)

def is_valu(i):
    return i.kind in ('valu', 'trans', 'permlane', 'readlane', 'dpp')

def required_gap(p, c):
    need = 0
    pd = set(p.dst)
    if p.kind == 'mfma':
        n_ab = 12 if p.passes == 8 else 8
        if c.kind == 'mfma':
            if pd & set(c.src): need = max(need, n_ab)
            cc = set(c.srcC)
            if pd & cc:
                if not (c.srcC == p.dst and c.passes == p.passes):
                    need = max(need, 10 if p.passes == 8 else 6)
            if (pd & set(c.dst)) and not (c.srcC == p.dst):
                need = max(need, n_ab)
        elif is_valu(c) or c.kind in ('ds', 'vmem'):
            if pd & (set(c.src) | set(c.dst)): need = max(need, n_ab)
        if is_valu(c):
            if set(p.srcC) & set(c.dst): need = max(need, 7 if p.passes == 8 else 3)
        return need
    if is_valu(p):
        vd = {r for r in pd if r[0] in 'va'}
        sd = {r for r in pd if r[0] == 's' or r == ('x', 'vcc')}
        if c.kind == 'mfma':
            if vd & (set(c.src) | set(c.srcC)): need = max(need, 2)
            if ('x', 'exec') in pd: need = max(need, 4)
        if is_valu(c):
            if p.kind == 'trans' and c.kind != 'trans' and (vd & set(c.src)): need = max(need, 1)
            if c.kind == 'permlane' and (vd & set(c.src)): need = max(need, 2)
            if c.kind == 'dpp' and (vd & set(c.src)): need = max(need, 2)
            if c.kind == 'readlane' and (vd & set(c.src)): need = max(need, 1)
            if sd & set(c.src):
                need = max(need, 4 if c.kind == 'readlane' else 2)
            if ('x', 'exec') in pd:
                if c.kind in ('readlane', 'permlane'): need = max(need, 4)
                if c.kind == 'dpp': need = max(need, 5)
        if c.kind == 'vmem' and (sd & set(c.src)): need = max(need, 5)
        if c.kind in ('salu', 'branch') and (sd & set(c.src)): need = max(need, 2)
        if c.kind == 'branch' and ('x', 'vcc') in pd and 'vcc' in c.op: need = max(need, 5)
        return need
    if p.kind == 'salu':
        if ('x', 'm0') in pd and c.kind == 'vmem' and c.lds_dma: need = max(need, 1)
        return need
    if p.kind == 'vmem' and p.is_store_wide:
        if is_valu(c) and (set(p.srcC) & set(c.dst)): need = max(need, 2)
        elif c.kind in ('ds', 'vmem', 'mfma') and (set(p.srcC) & set(c.dst)): need = max(need, 1)
        return need
    return need

MAXW = 13

class Asm:
    def __init__(self):
        self.ins = []
    def __call__(self, text):
        for line in text.split('\n'):
            line = line.strip()
            if line:
                self.ins.append(Ins(line))
    def raw(self, text):
        i = Ins(';'); i.text = text; self.ins.append(i)
    def label(self, name):
        self.ins.append(Ins(name + ':'))
    def comment(self, c):
        self.raw('; ' + c)

    def fix_hazards(self):
        out = []
        hist = []
        def need_for(c, hist):
            extra = 0; dist = 0
            for p in reversed(hist):
                g = required_gap(p, c)
                if g > dist: extra = max(extra, g - dist)
                dist += p.nops
                if dist >= MAXW: break
            return extra
        for i in self.ins:
            if i.nops == 0:
                out.append(i)
                if i.kind == 'dir' and ('endpgm' in i.text):
                    hist = []
                continue
            e = need_for(i, hist)
            while e > 0:
                n = min(e, 16)
                nop = Ins('s_nop %d' % (n - 1)); out.append(nop); hist.append(nop); e -= n
            out.append(i); hist.append(i)
            if i.op in ('s_endpgm', 's_branch'):
                hist = []
            if len(hist) > 40: hist = hist[-40:]
        self.ins = out
        labels = {i.label: k for k, i in enumerate(out) if i.kind == 'label'}
        for k, i in enumerate(out):
            if i.kind == 'branch':
                assert i.target in labels, 'missing label ' + i.target
                h = [x for x in out[max(0, k - 40):k + 1] if x.nops > 0]
                t = labels[i.target]
                walk = []
                for x in out[t:t + 60]:
                    if x.nops == 0: continue
                    walk.append(x)
                    if len(walk) >= 14: break
                hh = list(h)
                for c in walk:
                    e = need_for(c, hh)
                    if e > 0:
                        raise RuntimeError('hazard across branch %s -> %s (needs %d more wait states)' % (i.text, c.text, e))
                    hh.append(c)
                    if c.op in ('s_branch', 's_endpgm'): break
    def text(self):
        lines = []
        for i in self.ins:
            if i.kind in ('label', 'dir', 'none'):
                lines.append(i.text)
            else:
                lines.append('    ' + i.text)
        return '\n'.join(lines) + '\n'

def v(a, n=1):
    return 'v%d' % a if n == 1 else 'v[%d:%d]' % (a, a + n - 1)
def s(a, n=1):
    return 's%d' % a if n == 1 else 's[%d:%d]' % (a, a + n - 1)

def interleave(main, fill, per=1, start=0):
    out = []; fi = 0
    for k, m in enumerate(main):
        out.append(m)
        if k >= start:
            for _ in range(per):
                if fi < len(fill):
                    out.append(fill[fi]); fi += 1
    out += fill[fi:]
    return out
```

```python
import sys, os
sys.path.insert(0, os.path.dirname(os.path.abspath(__file__)))
from asmlib import *

NAME = 'sequential_preLN__compressed_kv_cla__dense_activation_gelu__prompt'

WS_XN   = 0x0000000
WS_KV   = 0x0400000
WS_CTX  = 0x2800000
WS_PART = 0x3C00000
WS_H    = 0x5400000
WS_HN   = 0x5800000
WS_G    = 0x5C00000
WS_END  = 0x6400000

KA_X, KA_CKV, KA_WQ, KA_WUK, KA_WUV, KA_WO, KA_BX, KA_W1, KA_B1, KA_W2, KA_B2, KA_OUT, KA_DBG, KA_WS = [8*i for i in range(14)]

def srd(a, sreg, lo, hi, nbytes, add=0):
    if add:
        a('s_add_u32 %s, %s, 0x%x' % (s(sreg), s(lo), add))
        a('s_addc_u32 %s, %s, 0' % (s(sreg+1), s(hi)))
    else:
        a('s_mov_b32 %s, %s' % (s(sreg), s(lo)))
        a('s_mov_b32 %s, %s' % (s(sreg+1), s(hi)))
    a('s_mov_b32 %s, 0x%x' % (s(sreg+2), nbytes))
    a('s_mov_b32 %s, 0x00020000' % s(sreg+3))

def kernel_header(a, name):
    a.raw('.globl %s' % name)
    a.raw('.p2align 8')
    a.raw('.type %s,@function' % name)
    a.label(name)

def kernel_desc(name, vgpr, sgpr=102):
    acc = (vgpr + 3) // 4 * 4
    return '''.p2align 6
.amdhsa_kernel %s
  .amdhsa_next_free_vgpr %d
  .amdhsa_next_free_sgpr %d
  .amdhsa_accum_offset %d
  .amdhsa_group_segment_fixed_size 0
  .amdhsa_kernarg_size 112
  .amdhsa_user_sgpr_count 2
  .amdhsa_user_sgpr_kernarg_segment_ptr 1
  .amdhsa_system_sgpr_workgroup_id_x 1
.end_amdhsa_kernel
''' % (name, vgpr, sgpr, acc)

def wave_sum(a, vr, tmp):
    a('v_add_f32_dpp %s, %s, %s quad_perm:[1,0,3,2] row_mask:0xf bank_mask:0xf' % (v(vr), v(vr), v(vr)))
    a('v_add_f32_dpp %s, %s, %s quad_perm:[2,3,0,1] row_mask:0xf bank_mask:0xf' % (v(vr), v(vr), v(vr)))
    a('v_add_f32_dpp %s, %s, %s row_half_mirror row_mask:0xf bank_mask:0xf' % (v(vr), v(vr), v(vr)))
    a('v_add_f32_dpp %s, %s, %s row_mirror row_mask:0xf bank_mask:0xf' % (v(vr), v(vr), v(vr)))
    a('v_mov_b32 %s, %s' % (v(tmp), v(vr)))
    a('v_permlane16_swap_b32 %s, %s' % (v(vr), v(tmp)))
    a('v_add_f32 %s, %s, %s' % (v(vr), v(vr), v(tmp)))
    a('v_mov_b32 %s, %s' % (v(tmp), v(vr)))
    a('v_permlane32_swap_b32 %s, %s' % (v(vr), v(tmp)))
    a('v_add_f32 %s, %s, %s' % (v(vr), v(vr), v(tmp)))

def layernorm_row(a, d0, has2, tmp, eps_s):
    f = tmp
    for r in range(8):
        a('v_lshlrev_b32 %s, 16, %s' % (v(f + 2*r), v(d0 + r)))
        a('v_and_b32 %s, 0xffff0000, %s' % (v(f + 2*r + 1), v(d0 + r)))
    sm = tmp + 16; t2 = tmp + 17; t3 = tmp + 18; msk = tmp + 19
    a('v_add_f32 %s, %s, %s' % (v(sm), v(f), v(f+1)))
    for r in range(2, 16):
        a('v_add_f32 %s, %s, %s' % (v(sm), v(sm), v(f + r)))
    wave_sum(a, sm, t2)
    a('v_mul_f32 %s, 0x%08x, %s' % (v(sm), f32bits(1.0/640), v(sm)))
    for r in range(16):
        a('v_sub_f32 %s, %s, %s' % (v(f + r), v(f + r), v(sm)))
    for r in range(8, 16):
        a('v_mul_f32 %s, %s, %s' % (v(f + r), v(f + r), v(msk)))
    a('v_mul_f32 %s, %s, %s' % (v(sm), v(f), v(f)))
    for r in range(1, 16):
        a('v_fmac_f32 %s, %s, %s' % (v(sm), v(f + r), v(f + r)))
    wave_sum(a, sm, t2)
    a('v_mov_b32 %s, 0x%08x' % (v(t3), f32bits(1e-5)))
    a('v_fmac_f32 %s, 0x%08x, %s' % (v(t3), f32bits(1.0/640), v(sm)))
    a('v_rsq_f32 %s, %s' % (v(t3), v(t3)))
    for r in range(16):
        a('v_mul_f32 %s, %s, %s' % (v(f + r), v(f + r), v(t3)))
    for r in range(8):
        a('v_cvt_pk_bf16_f32 %s, %s, %s' % (v(d0 + r), v(f + 2*r), v(f + 2*r + 1)))

import struct
def f32bits(x):
    return struct.unpack('<I', struct.pack('<f', x))[0]

def gen_kv(a):
    name = 'kv_kernel'
    kernel_header(a, name)
    a('s_cmp_ge_u32 s2, 256')
    a('s_cbranch_scc1 L_kv_end')
    a('s_load_dwordx2 s[4:5], s[0:1], %d' % KA_CKV)
    a('s_load_dwordx4 s[8:11], s[0:1], %d' % KA_WUK)
    a('s_load_dwordx2 s[6:7], s[0:1], %d' % KA_X)
    a('s_load_dwordx2 s[12:13], s[0:1], %d' % KA_WS)
    a('s_and_b32 s20, s2, 7')
    a('s_lshr_b32 s21, s2, 3')
    a('s_and_b32 s22, s21, 7')
    a('s_lshr_b32 s21, s21, 3')
    a('s_lshl_b32 s20, s20, 2')
    a('s_add_u32 s20, s20, s21')
    a('s_lshr_b32 s23, s20, 4')
    a('s_and_b32 s24, s20, 15')
    a('v_lshrrev_b32 v1, 6, v0')
    a('v_and_b32 v2, 63, v0')
    a('v_readfirstlane_b32 s25, v1')
    a('s_waitcnt lgkmcnt(0)')
    a('s_cmp_eq_u32 s23, 0')
    a('s_cselect_b32 s26, s8, s10')
    a('s_cselect_b32 s27, s9, s11')
    srd(a, 28, 26, 27, 512*4096*2)
    srd(a, 32, 4, 5, 2048*512*2)
    srd(a, 36, 12, 13, 32*1024*1024, WS_KV)
    srd(a, 40, 6, 7, 2048*640*2)
    srd(a, 44, 12, 13, 2048*640*2, WS_XN)
    a('s_lshl_b32 s48, s2, 3')
    a('s_add_u32 s48, s48, s25')
    a('s_mul_i32 s49, s48, 1280')
    a('v_lshlrev_b32 v3, 4, v2')
    a('v_mov_b32 v20, 0'); a('v_mov_b32 v21, 0'); a('v_mov_b32 v22, 0'); a('v_mov_b32 v23, 0')
    a('buffer_load_dwordx4 v[16:19], v3, s[40:43], s49 offen')
    a('v_add_u32 v4, 1024, v3')
    a('v_cmp_gt_u32 vcc, 16, v2')
    a('v_mov_b32 v5, 0x7fffffff')
    a('v_cndmask_b32 v4, v5, v4, vcc')
    a('buffer_load_dwordx4 v[20:23], v4, s[40:43], s49 offen')
    a('s_lshl_b32 s50, s25, 1')
    a('v_lshrrev_b32 v7, 5, v2')
    a('v_add_u32 v7, s50, v7')
    a('v_and_b32 v8, 3, v7')
    a('v_lshlrev_b32 v8, 2, v8')
    a('v_and_b32 v9, 31, v2')
    a('v_xor_b32 v8, v8, v9')
    a('v_lshlrev_b32 v8, 4, v8')
    a('v_lshlrev_b32 v7, 13, v7')
    a('v_add_u32 v6, v7, v8')
    a('s_lshl_b32 s50, s25, 3')
    a('v_lshrrev_b32 v7, 3, v2')
    a('v_add_u32 v7, s50, v7')
    a('v_lshrrev_b32 v8, 1, v7')
    a('v_and_b32 v8, 7, v8')
    a('v_and_b32 v9, 7, v2')
    a('v_xor_b32 v8, v8, v9')
    a('v_lshlrev_b32 v8, 4, v8')
    a('v_lshlrev_b32 v7, 10, v7')
    a('v_add_u32 v10, v7, v8')
    a('s_lshl_b32 s51, s24, 9')
    a('s_lshl_b32 s52, s22, 18')
    a('s_lshl_b32 s53, s25, 10')
    def dma(st):
        buf = (st & 1) * 65536
        L = []
        for j in range(4):
            L.append('s_add_u32 m0, s53, %d' % (buf + j*8192))
            L.append('s_add_u32 s54, s51, %d' % (st*64*8192 + j*16*8192))
            L.append('buffer_load_dwordx4 v6, s[28:31], s54 offen lds')
        for j in range(4):
            L.append('s_add_u32 m0, s53, %d' % (buf + 32768 + j*8192))
            L.append('s_add_u32 s54, s52, %d' % (j*64*1024 + st*128))
            L.append('buffer_load_dwordx4 v10, s[32:35], s54 offen lds')
        return L
    for x in dma(0): a(x)
    for x in dma(1): a(x)
    a('v_and_b32 v7, 3, v2')
    a('v_and_b32 v8, 1, v7')
    a('v_lshlrev_b32 v8, 1, v8')
    a('v_lshrrev_b32 v9, 1, v7')
    a('v_or_b32 v8, v8, v9')
    a('s_cmp_eq_u32 s23, 0')
    a('s_cselect_b64 s[56:57], -1, 0')
    a('v_cndmask_b32 v7, v7, v8, s[56:57]')
    a('v_lshrrev_b32 v8, 1, v7')
    a('v_and_b32 v7, 1, v7')
    a('v_lshlrev_b32 v7, 3, v7')
    a('v_lshrrev_b32 v9, 4, v2')
    a('v_and_b32 v9, 1, v9')
    a('v_lshlrev_b32 v9, 1, v9')
    a('v_add_u32 v8, v8, v9')
    a('s_and_b32 s55, s25, 3')
    a('s_lshl_b32 s55, s55, 3')
    a('v_add_u32 v8, s55, v8')
    a('v_lshrrev_b32 v9, 2, v2')
    a('v_and_b32 v9, 3, v9')
    a('v_lshlrev_b32 v11, 2, v9')
    a('v_lshrrev_b32 v12, 5, v2')
    a('v_lshlrev_b32 v12, 3, v12')
    a('v_add_u32 v12, v12, v9')
    a('v_lshlrev_b32 v12, 9, v12')
    a('v_add_u32 v12, v12, v7')
    WA = 24
    for i in range(2):
        a('v_add_u32 v13, %d, v8' % (4*i))
        a('v_xor_b32 v13, v13, v11')
        a('v_lshlrev_b32 v13, 4, v13')
        a('v_add_u32 %s, v12, v13' % v(WA + i))
        a('v_add_u32 %s, 0x10000, %s' % (v(WA + 2 + i), v(WA + i)))
    a('v_and_b32 v7, 31, v2')
    a('v_and_b32 v8, 0x13, v7')
    a('v_and_b32 v9, 4, v7')
    a('v_lshlrev_b32 v9, 1, v9')
    a('v_or_b32 v8, v8, v9')
    a('v_and_b32 v9, 8, v7')
    a('v_lshrrev_b32 v9, 1, v9')
    a('v_or_b32 v8, v8, v9')
    a('v_cndmask_b32 v7, v8, v7, s[56:57]')
    a('v_lshrrev_b32 v8, 1, v7')
    a('v_and_b32 v8, 7, v8')
    a('v_lshrrev_b32 v9, 5, v2')
    a('s_lshr_b32 s55, s25, 2')
    a('s_lshl_b32 s55, s55, 14')
    a('s_add_u32 s55, s55, 32768')
    a('v_lshlrev_b32 v7, 7, v7')
    a('v_add_u32 v7, s55, v7')
    XA = 28
    for kk in range(4):
        a('v_add_u32 v13, %d, v9' % (2*kk))
        a('v_xor_b32 v13, v13, v8')
        a('v_lshlrev_b32 v13, 4, v13')
        a('v_add_u32 %s, v7, v13' % v(XA + kk))
        a('v_add_u32 %s, 0x10000, %s' % (v(XA + 4 + kk), v(XA + kk)))
    ACC = 128
    FR = 64
    for r in range(128):
        a('v_mov_b32 %s, 0' % v(ACC + r))
    def reads(st, kk, fs):
        b = st & 1
        L = []
        base = FR + 24*fs
        for i in range(2):
            for T in range(2):
                L.append('ds_read_b64_tr_b16 %s, %s offset:%d' % (v(base + 4*i + 2*T, 2), v(WA + 2*b + i), kk*8192 + T*2048))
        for j in range(4):
            L.append('ds_read_b128 %s, %s offset:%d' % (v(base + 8 + 4*j, 4), v(XA + 4*b + kk), j*4096))
        return [L[0], L[1], L[4], L[2], L[3], L[5], L[6], L[7]]
    def mfmas(fs, mat):
        base = FR + 24*fs
        L = []
        for j in range(4):
            for i in range(2):
                acc = v(ACC + (i*4 + j)*16, 16)
                wf = v(base + 4*i, 4); xf = v(base + 8 + 4*j, 4)
                if mat == 0:
                    L.append('v_mfma_f32_32x32x16_bf16 %s, %s, %s, %s' % (acc, wf, xf, acc))
                else:
                    L.append('v_mfma_f32_32x32x16_bf16 %s, %s, %s, %s' % (acc, xf, wf, acc))
        return L
    a('s_cmp_eq_u32 s23, 0')
    a('s_cbranch_scc0 L_kv_vpath')
    NST = 8
    for mat in range(2):
        if mat == 1:
            a.label('L_kv_vpath')
        a('s_waitcnt vmcnt(8)')
        a('s_barrier')
        for x in reads(0, 0, 0): a(x)
        for st in range(NST):
            for kk in range(4):
                fs = kk & 1
                if kk < 3:
                    a('s_waitcnt lgkmcnt(0)')
                    for x in interleave(mfmas(fs, mat), reads(st, kk + 1, fs ^ 1), per=2): a(x)
                else:
                    if st + 1 < NST:
                        a('s_waitcnt vmcnt(0) lgkmcnt(0)')
                        a('s_barrier')
                        fill = []
                        if st + 2 < NST: fill += dma(st + 2)
                        rd = reads(st + 1, 0, fs ^ 1)
                        for x in interleave(mfmas(fs, mat), rd + fill, per=4): a(x)
                    else:
                        a('s_waitcnt lgkmcnt(0)')
                        for x in mfmas(fs, mat): a(x)
        a('s_lshr_b32 s55, s25, 1')
        a('s_and_b32 s55, s55, 1')
        a('s_lshl_b32 s58, s24, 1')
        a('s_add_u32 s58, s58, s55')
        a('s_lshl_b32 s58, s58, 5')
        a('s_lshl_b32 s59, s22, 2')
        a('s_add_u32 s58, s58, s59')
        a('s_lshr_b32 s59, s25, 2')
        a('s_lshl_b32 s59, s59, 1')
        a('s_add_u32 s58, s58, s59')
        a('s_lshl_b32 s58, s58, 15')
        a('s_and_b32 s59, s25, 1')
        a('v_and_b32 v7, 31, v2')
        a('v_lshrrev_b32 v8, 5, v2')
        a('v_lshlrev_b32 v7, 4, v7')
        if mat == 0:
            a('s_lshl_b32 s59, s59, 13')
            a('v_lshlrev_b32 v8, 10, v8')
        else:
            a('s_lshl_b32 s59, s59, 10')
            a('s_add_u32 s59, s59, 16384')
            a('v_lshlrev_b32 v8, 11, v8')
        a('v_add_u32 v7, v7, v8')
        a('s_add_u32 s58, s58, s59')
        a('v_add_u32 v7, s58, v7')
        t = 36
        cnt = 0
        for j in range(4):
            for i in range(2):
                accb = ACC + (i*4 + j)*16
                for rr in range(2):
                    tb_ = t + (cnt % 4) * 4; cnt += 1
                    for q in range(4):
                        a('v_cvt_pk_bf16_f32 %s, %s, %s' % (v(tb_ + q), v(accb + 8*rr + 2*q), v(accb + 8*rr + 2*q + 1)))
                    if mat == 0:
                        off = (j >> 1)*32768 + (4*i + 2*rr)*1024 + (j & 1)*512
                    else:
                        off = (j >> 1)*32768 + (4*(j & 1) + 2*rr)*2048 + i*512
                    a('s_add_u32 s60, 0, %d' % off if False else 's_mov_b32 s60, %d' % off)
                    a('buffer_store_dwordx4 %s, v7, s[36:39], s60 offen' % v(tb_, 4))
        if mat == 0:
            a('s_branch L_kv_ln')
    a.label('L_kv_ln')
    a('v_cmp_gt_u32 vcc, 16, v2')
    a('v_mov_b32 v55, 0')
    a('v_cndmask_b32 v55, v55, 1.0, vcc')
    layernorm_row(a, 16, True, 36, None)
    a('s_lshr_b32 s55, s48, 7')
    a('s_mul_i32 s55, s55, %d' % (80*128*16))
    a('s_and_b32 s58, s48, 127')
    a('s_lshl_b32 s58, s58, 4')
    a('s_add_u32 s55, s55, s58')
    a('v_lshlrev_b32 v7, 11, v2')
    a('buffer_store_dwordx4 v[16:19], v7, s[44:47], s55 offen')
    a('v_add_u32 v8, 0x20000, v7')
    a('v_mov_b32 v5, 0x7fffffff')
    a('v_cndmask_b32 v8, v5, v8, vcc')
    a('buffer_store_dwordx4 v[20:23], v8, s[44:47], s55 offen')
    a.label('L_kv_end')
    a('s_endpgm')
    return name, 256, (256, 512, 131072)

def main():
    a = Asm()
    kernels = []
    kernels.append(gen_kv(a))
    a.fix_hazards()
    hdr = open(os.path.join(os.path.dirname(os.path.abspath(__file__)), 'header.txt')).read()
    out = hdr
    for (n, vg, (g, b, lds)) in kernels:
        out += '; @launch kernel=%s grid=(%d,1,1) block=(%d,1,1) lds=%d\n' % (n, g, b, lds)
    out += '.amdgcn_target "amdgcn-amd-amdhsa--gfx950"\n.text\n'
    out += a.text()
    out += '.section .rodata,"a"\n'
    for (n, vg, _) in kernels:
        out += kernel_desc(n, vg)
    path = sys.argv[1] if len(sys.argv) > 1 else 'cdna_kernels/%s.s' % NAME
    open(path, 'w').write(out)
    print('wrote', path, len(out), 'bytes')

if __name__ == '__main__':
    main()
```

```python
import re

REG_RE = re.compile(r'^(-|\|)?(abs\()?([vas])(\d+)\)?\|?$')
RNG_RE = re.compile(r'^(-)?([vas])\[(\d+):(\d+)\]$')

def parse_reg(tok):
    tok = tok.strip()
    m = RNG_RE.match(tok)
    if m:
        k, a, b = m.group(2), int(m.group(3)), int(m.group(4))
        return [(k, i) for i in range(a, b + 1)]
    m = REG_RE.match(tok)
    if m:
        return [(m.group(3), int(m.group(4)))]
    if tok == 'vcc':
        return [('x', 'vcc')]
    if tok == 'exec':
        return [('x', 'exec')]
    if tok == 'm0':
        return [('x', 'm0')]
    return []

TRANS = ('v_exp_f32', 'v_log_f32', 'v_rcp_f32', 'v_rsq_f32', 'v_sqrt_f32', 'v_sin_f32', 'v_cos_f32')

class Ins:
    __slots__ = ('text', 'op', 'kind', 'dst', 'src', 'srcC', 'passes', 'nops', 'label', 'target', 'is_store_wide', 'lds_dma')
    def __init__(self, text):
        self.text = text
        self.dst = []; self.src = []; self.srcC = []
        self.passes = 0; self.nops = 1; self.label = None; self.target = None
        self.is_store_wide = False; self.lds_dma = False
        t = text.split(';')[0].strip()
        if not t:
            self.kind = 'none'; self.op = ''; self.nops = 0; return
        if t.endswith(':'):
            self.kind = 'label'; self.op = ''; self.label = t[:-1]; self.nops = 0; return
        if t.startswith('.'):
            self.kind = 'dir'; self.op = t; self.nops = 0; return
        parts = t.split(None, 1)
        op = parts[0]; self.op = op
        rest = parts[1] if len(parts) > 1 else ''
        ops = []; cur = ''; depth = 0
        for ch in rest:
            if ch == '[': depth += 1
            if ch == ']': depth -= 1
            if ch == ',' and depth == 0:
                ops.append(cur.strip()); cur = ''
            else:
                cur += ch
        if cur.strip(): ops.append(cur.strip())
        mods = []
        if ops:
            sp = ops[-1].split()
            ops[-1] = sp[0] if sp else ''
            mods = sp[1:]
        R = [parse_reg(o) for o in ops]
        if op.startswith('v_mfma'):
            self.kind = 'mfma'
            self.passes = 8 if '32x32' in op else 4
            self.dst = R[0]; self.src = R[1] + R[2]; self.srcC = R[3]
        elif op.startswith('v_'):
            self.kind = 'trans' if op.replace('_e32', '').replace('_e64', '') in TRANS else 'valu'
            base = op
            if base.startswith('v_cmp'):
                self.dst = R[0]; self.src = sum(R[1:], [])
                if base.startswith('v_cmpx'): self.dst = self.dst + [('x', 'exec')]
            elif base.startswith('v_permlane32_swap') or base.startswith('v_permlane16_swap'):
                self.kind = 'permlane'
                self.dst = R[0] + R[1]; self.src = R[0] + R[1]
            elif base.startswith('v_add_co') or base.startswith('v_sub_co') or base.startswith('v_addc_co') or base.startswith('v_subb_co'):
                self.dst = R[0] + R[1]; self.src = sum(R[2:], [])
            elif base.startswith('v_readfirstlane') or base.startswith('v_readlane'):
                self.kind = 'readlane'
                self.dst = R[0]; self.src = sum(R[1:], [])
            else:
                self.dst = R[0]; self.src = sum(R[1:], [])
                if base.startswith('v_fmac') or base.startswith('v_mac') or base.startswith('v_pk_fmac') or base.startswith('v_dot2c'):
                    self.src = self.src + R[0]
                if base.startswith('v_cndmask') and len(ops) == 3:
                    self.src = self.src + [('x', 'vcc')]
            if any(m.startswith('row_') or m.startswith('quad_perm') or m.startswith('wave_') or m.startswith('row') for m in mods):
                self.kind = 'dpp'
        elif op.startswith('ds_'):
            self.kind = 'ds'
            if op.startswith('ds_read') or op.startswith('ds_bpermute') or op.startswith('ds_permute') or op.startswith('ds_swizzle'):
                self.dst = R[0]; self.src = sum(R[1:], [])
            else:
                self.src = sum(R, [])
        elif op.startswith('buffer_') or op.startswith('global_'):
            self.kind = 'vmem'
            if 'lds' in mods or op.startswith('global_load_lds'):
                self.lds_dma = True
                self.src = sum(R, []) + [('x', 'm0')]
            elif 'load' in op:
                self.dst = R[0]; self.src = sum(R[1:], [])
            else:
                self.src = sum(R, [])
                if op.endswith('x4') or op.endswith('x3'):
                    self.is_store_wide = True
                    self.srcC = R[0] if op.startswith('buffer_') else R[1]
        elif op.startswith('s_'):
            self.kind = 'salu'
            if op == 's_nop':
                self.nops = int(ops[0], 0) + 1
            elif op.startswith('s_cbranch') or op == 's_branch':
                self.kind = 'branch'; self.target = ops[0]
            elif op in ('s_waitcnt', 's_barrier', 's_endpgm', 's_setprio', 's_sleep'):
                pass
            elif op.startswith('s_cmp') or op.startswith('s_bitcmp'):
                self.src = sum(R, [])
            elif 'saveexec' in op:
                self.dst = R[0] + [('x', 'exec')]; self.src = sum(R[1:], [])
            else:
                self.dst = R[0] if R else []; self.src = sum(R[1:], [])
        else:
            raise ValueError('unknown instruction: ' + text)

def is_valu(i):
    return i.kind in ('valu', 'trans', 'permlane', 'readlane', 'dpp')

def required_gap(p, c):
    need = 0
    pd = set(p.dst)
    if p.kind == 'mfma':
        n_ab = 12 if p.passes == 8 else 8
        if c.kind == 'mfma':
            if pd & set(c.src): need = max(need, n_ab)
            cc = set(c.srcC)
            if pd & cc:
                if not (c.srcC == p.dst and c.passes == p.passes):
                    need = max(need, 10 if p.passes == 8 else 6)
            if (pd & set(c.dst)) and not (c.srcC == p.dst):
                need = max(need, n_ab)
        elif is_valu(c) or c.kind in ('ds', 'vmem'):
            if pd & (set(c.src) | set(c.dst)): need = max(need, n_ab)
        if is_valu(c):
            if set(p.srcC) & set(c.dst): need = max(need, 7 if p.passes == 8 else 3)
        return need
    if is_valu(p):
        vd = {r for r in pd if r[0] in 'va'}
        sd = {r for r in pd if r[0] == 's' or r == ('x', 'vcc')}
        if c.kind == 'mfma':
            if vd & (set(c.src) | set(c.srcC)): need = max(need, 2)
            if ('x', 'exec') in pd: need = max(need, 4)
        if is_valu(c):
            if p.kind == 'trans' and c.kind != 'trans' and (vd & set(c.src)): need = max(need, 1)
            if c.kind == 'permlane' and (vd & set(c.src)): need = max(need, 2)
            if c.kind == 'dpp' and (vd & set(c.src)): need = max(need, 2)
            if c.kind == 'readlane' and (vd & set(c.src)): need = max(need, 1)
            if sd & set(c.src):
                need = max(need, 4 if c.kind == 'readlane' else 2)
            if ('x', 'exec') in pd:
                if c.kind in ('readlane', 'permlane'): need = max(need, 4)
                if c.kind == 'dpp': need = max(need, 5)
        if c.kind == 'vmem' and (sd & set(c.src)): need = max(need, 5)
        if c.kind in ('salu', 'branch') and (sd & set(c.src)): need = max(need, 2)
        if c.kind == 'branch' and ('x', 'vcc') in pd and 'vcc' in c.op: need = max(need, 5)
        return need
    if p.kind == 'salu':
        if ('x', 'm0') in pd and c.kind == 'vmem' and c.lds_dma: need = max(need, 1)
        return need
    if p.kind == 'vmem' and p.is_store_wide:
        if is_valu(c) and (set(p.srcC) & set(c.dst)): need = max(need, 2)
        elif c.kind in ('ds', 'vmem', 'mfma') and (set(p.srcC) & set(c.dst)): need = max(need, 1)
        return need
    return need

MAXW = 13

class Asm:
    def __init__(self):
        self.ins = []
    def __call__(self, text):
        for line in text.split('\n'):
            line = line.strip()
            if line:
                self.ins.append(Ins(line))
    def raw(self, text):
        i = Ins(';'); i.text = text; self.ins.append(i)
    def label(self, name):
        self.ins.append(Ins(name + ':'))
    def comment(self, c):
        self.raw('; ' + c)

    def fix_hazards(self):
        out = []
        hist = []
        def need_for(c, hist):
            extra = 0; dist = 0
            for p in reversed(hist):
                g = required_gap(p, c)
                if g > dist: extra = max(extra, g - dist)
                dist += p.nops
                if dist >= MAXW: break
            return extra
        for i in self.ins:
            if i.nops == 0:
                out.append(i)
                if i.kind == 'dir' and ('endpgm' in i.text):
                    hist = []
                continue
            e = need_for(i, hist)
            while e > 0:
                n = min(e, 16)
                nop = Ins('s_nop %d' % (n - 1)); out.append(nop); hist.append(nop); e -= n
            out.append(i); hist.append(i)
            if i.op in ('s_endpgm', 's_branch'):
                hist = []
            if len(hist) > 40: hist = hist[-40:]
        self.ins = out
        changed = True
        while changed:
            changed = False
            out = self.ins
            labels = {i.label: k for k, i in enumerate(out) if i.kind == 'label'}
            for k, i in enumerate(out):
                if i.kind != 'branch': continue
                assert i.target in labels, 'missing label ' + i.target
                h = []
                for x in out[max(0, k - 40):k + 1]:
                    if x.nops == 0: continue
                    h.append(x)
                    if x is not i and x.op in ('s_branch', 's_endpgm'): h = []
                t = labels[i.target]
                walk = []
                for x in out[t:t + 80]:
                    if x.nops == 0: continue
                    walk.append(x)
                    if len(walk) >= 14: break
                hh = list(h)
                worst = 0
                for c in walk:
                    e = need_for(c, hh)
                    worst = max(worst, e)
                    hh.append(c)
                    if c.op in ('s_branch', 's_endpgm'): break
                if worst > 0:
                    out.insert(k, Ins('s_nop %d' % (worst - 1)))
                    changed = True
                    break
    def text(self):
        lines = []
        for i in self.ins:
            if i.kind in ('label', 'dir', 'none'):
                lines.append(i.text)
            else:
                lines.append('    ' + i.text)
        return '\n'.join(lines) + '\n'

def v(a, n=1):
    return 'v%d' % a if n == 1 else 'v[%d:%d]' % (a, a + n - 1)
def s(a, n=1):
    return 's%d' % a if n == 1 else 's[%d:%d]' % (a, a + n - 1)

def interleave(main, fill, per=1, start=0):
    out = []; fi = 0
    for k, m in enumerate(main):
        out.append(m)
        if k >= start:
            for _ in range(per):
                if fi < len(fill):
                    out.append(fill[fi]); fi += 1
    out += fill[fi:]
    return out
```

```python
from asmlib import *
from common import *
import os

LOG2E = 1.4426950408889634
CSC = (128 ** -0.5) * LOG2E

def stream(a, reads, mfmas, fillers, depth, per_fill=None, pre_outstanding=0):
    issued = 0
    n = len(mfmas)
    for _ in range(min(depth, len(reads))):
        a(reads[issued]); issued += 1
    fi = 0
    waited = -1
    for i, (t, need) in enumerate(mfmas):
        while issued <= need:
            a(reads[issued]); issued += 1
        if need > waited:
            a('s_waitcnt lgkmcnt(%d)' % min(15, issued - need - 1))
            waited = need
        a(t)
        if issued < len(reads):
            a(reads[issued]); issued += 1
        tgt = (len(fillers) * (i + 1) + n - 1) // n
        while fi < tgt:
            a(fillers[fi]); fi += 1
    while fi < len(fillers):
        a(fillers[fi]); fi += 1

class Stream:
    def __init__(self, a, reads, depth, pre=0):
        self.a = a; self.reads = reads; self.issued = pre; self.waited = -1
        while self.issued < min(depth, len(reads)):
            a(reads[self.issued]); self.issued += 1
    def seg(self, mfmas, fillers):
        a = self.a; n = len(mfmas); fi = 0
        for i, (t, need) in enumerate(mfmas):
            while self.issued <= need:
                a(self.reads[self.issued]); self.issued += 1
            if need > self.waited:
                a('s_waitcnt lgkmcnt(%d)' % min(15, self.issued - need - 1))
                self.waited = need
            a(t)
            if self.issued < len(self.reads):
                a(self.reads[self.issued]); self.issued += 1
            tgt = (len(fillers) * (i + 1) + n - 1) // n
            while fi < tgt:
                a(fillers[fi]); fi += 1
        while fi < len(fillers):
            a(fillers[fi]); fi += 1

def gen_attn(a):
    name = 'attn_kernel'
    if not FZ.on:
        kernel_header(a, name)
        a('s_cmp_ge_u32 s2, 256')
        a('s_cbranch_scc1 L_at_end')
    a('s_load_dwordx2 s[4:5], s[0:1], %d' % KA_WQ)
    a('s_load_dwordx2 s[12:13], s[0:1], %d' % KA_WS)
    stamp(a, 0)
    rtstamp(a, 8)
    if os.environ.get('RT'):
        a('s_memrealtime s[82:83]'); a('s_waitcnt lgkmcnt(0)')
    a('s_and_b32 s20, s2, 7')
    a('s_lshl_b32 s20, s20, 2')
    a('s_lshr_b32 s21, s2, 3')
    a('s_and_b32 s21, s21, 3')
    a('s_add_u32 s20, s20, s21')
    a('s_lshr_b32 s21, s2, 5')
    a('s_sub_u32 s22, 15, s21')
    a('v_lshrrev_b32 v2, 6, v0')
    a('v_and_b32 v1, 63, v0')
    a('v_readfirstlane_b32 s25, v2')
    a('s_waitcnt lgkmcnt(0)')
    srd(a, 28, 4, 5, 640*4096*2)
    srd(a, 32, 12, 13, 2048*640*2, WS_XN)
    srd(a, 36, 12, 13, 32 << 20, WS_KV)
    srd(a, 40, 12, 13, 16 << 20, WS_CTX)
    a('s_lshl_b32 s50, s25, 2')
    a('v_lshrrev_b32 v7, 4, v1')
    a('v_lshlrev_b32 v8, 2, v7')
    a('v_and_b32 v9, 15, v1')
    a('v_xor_b32 v8, v8, v9')
    a('v_lshlrev_b32 v8, 4, v8')
    a('v_add_u32 v7, s50, v7')
    a('v_lshlrev_b32 v7, 13, v7')
    a('v_add_u32 v6, v7, v8')
    a('s_lshl_b32 s53, s25, 10')
    a('v_lshlrev_b32 v4, 4, v1')
    a('v_add_u32 v4, s53, v4')
    a('s_lshl_b32 s51, s20, 8')
    a('s_mul_i32 s52, s21, %d' % (80*2048))
    a('s_mul_i32 s55, s22, %d' % (80*2048))
    QST = 49152
    def qdma(st):
        buf = (st % 3) * QST
        L = []
        for j in range(2):
            L.append('s_add_u32 m0, s53, %d' % (buf + j*8192))
            L.append('s_add_u32 s54, s51, %d' % (st*64*8192 + j*32*8192))
            L.append('buffer_load_dwordx4 v6, s[28:31], s54 offen lds')
        for sel, sb in ((0, 's52'), (1, 's55')):
            for j in range(2):
                L.append('s_add_u32 m0, s53, %d' % (buf + 16384 + sel*16384 + j*8192))
                L.append('s_add_u32 s54, %s, %d' % (sb, st*16384 + j*8192))
                L.append('buffer_load_dwordx4 v4, s[32:35], s54 offen lds')
        return L
    def idx_xn(a, d, l):
        a('v_and_b32 %s, 15, %s' % (v(d), v(l)))
        a('s_lshl_b32 s88, s21, 4'); a('s_lshl_b32 s89, s22, 4')
        a('v_mov_b32 %s, s88' % v(d + 2)); a('v_mov_b32 %s, s89' % v(d + 3))
        a('v_cmp_gt_u32 vcc, 16, %s' % v(l))
        a('v_cndmask_b32 %s, %s, %s, vcc' % (v(d + 2), v(d + 3), v(d + 2)))
        a('v_add_u32 %s, %s, %s' % (v(d), v(d), v(d + 2)))
        a('v_add_u32 %s, %d, %s' % (v(d), F1, v(d)))
    fz_wait(a, 32, idx_xn, tmp=8)
    for x in qdma(0): a(x)
    for x in qdma(1): a(x)
    if not os.environ.get('NOPF') and not STAMPS:
        prefetch_arrays(a, [(KA_WO, 4096*640*2), (KA_W1, 640*1728*2), (KA_W2, 1728*640*2)], 'at', 252, 253, 1)
    a('v_and_b32 v7, 3, v1')
    a('v_and_b32 v8, 1, v7')
    a('v_lshlrev_b32 v8, 1, v8')
    a('v_lshrrev_b32 v9, 1, v7')
    a('v_or_b32 v7, v8, v9')
    a('v_lshrrev_b32 v8, 1, v7')
    a('v_and_b32 v7, 1, v7')
    a('v_lshlrev_b32 v7, 3, v7')
    a('v_lshrrev_b32 v9, 4, v1')
    a('v_and_b32 v9, 1, v9')
    a('v_lshlrev_b32 v9, 1, v9')
    a('v_add_u32 v8, v8, v9')
    a('s_and_b32 s56, s25, 1')
    a('s_lshl_b32 s56, s56, 3')
    a('v_add_u32 v8, s56, v8')
    a('v_lshrrev_b32 v9, 2, v1')
    a('v_and_b32 v9, 3, v9')
    a('v_lshlrev_b32 v11, 2, v9')
    a('v_lshrrev_b32 v12, 5, v1')
    a('v_lshlrev_b32 v12, 3, v12')
    a('v_add_u32 v12, v12, v9')
    a('v_lshlrev_b32 v12, 8, v12')
    a('v_add_u32 v12, v12, v7')
    WA = 224
    for i in range(2):
        a('v_add_u32 v13, %d, v8' % (4*i))
        a('v_xor_b32 v13, v13, v11')
        a('v_lshlrev_b32 v13, 4, v13')
        a('v_add_u32 %s, v12, v13' % v(WA + i))
        for stg in (1, 2):
            a('v_add_u32 %s, %d, %s' % (v(WA + 2*stg + i), stg*QST, v(WA + i)))
    XA = 230
    a('s_lshr_b32 s56, s25, 2')
    a('s_lshl_b32 s56, s56, 14')
    a('s_lshr_b32 s57, s25, 1')
    a('s_and_b32 s57, s57, 1')
    a('s_lshl_b32 s57, s57, 10')
    a('s_add_u32 s56, s56, s57')
    a('s_add_u32 s56, s56, 16384')
    a('v_and_b32 v7, 31, v1')
    a('v_lshlrev_b32 v7, 4, v7')
    a('v_lshrrev_b32 v8, 5, v1')
    a('v_lshlrev_b32 v8, 11, v8')
    a('v_add_u32 v7, v7, v8')
    a('v_add_u32 %s, s56, v7' % v(XA))
    for stg in (1, 2):
        a('v_add_u32 %s, %d, %s' % (v(XA + stg), stg*QST, v(XA)))
    ACC = 128; FR = 48
    for r in range(64): a('v_mov_b32 %s, 0' % v(ACC + r))
    def qreads(st, kk, fs):
        b = st % 3; base = FR + 16*fs
        L = []
        for i in range(2):
            for T in range(2):
                L.append('ds_read_b64_tr_b16 %s, %s offset:%d' % (v(base + 4*i + 2*T, 2), v(WA + 2*b + i), kk*4096 + T*1024))
        for j in range(2):
            L.append('ds_read_b128 %s, %s offset:%d' % (v(base + 8 + 4*j, 4), v(XA + b), kk*4096 + j*512))
        return [L[0], L[1], L[4], L[2], L[3], L[5]]
    def qmfmas(fs):
        base = FR + 16*fs
        L = []
        for j in range(2):
            for i in range(2):
                acc = v(ACC + (i*2 + j)*16, 16)
                L.append('v_mfma_f32_32x32x16_bf16 %s, %s, %s, %s' % (acc, v(base + 4*i, 4), v(base + 8 + 4*j, 4), acc))
        return L
    NQ = 10
    a('s_waitcnt vmcnt(6)')
    a('s_barrier')
    if not os.environ.get('RT'): stamp(a, 1)
    for x in qdma(2): a(x)
    for x in qreads(0, 0, 0): a(x)
    for st in range(NQ):
        for kk in range(4):
            fs = kk & 1
            if kk < 3:
                a('s_waitcnt lgkmcnt(0)')
                for x in interleave(qmfmas(fs), qreads(st, kk + 1, fs ^ 1), per=2): a(x)
            elif st + 1 < NQ:
                a('s_waitcnt vmcnt(%d) lgkmcnt(0)' % (6 if st + 2 < NQ else 0))
                a('s_barrier')
                fill = qdma(st + 3) if st + 3 < NQ else []
                for x in interleave(qmfmas(fs), qreads(st + 1, 0, fs ^ 1) + fill, per=6): a(x)
            else:
                a('s_waitcnt lgkmcnt(0)')
                for x in qmfmas(fs): a(x)
    a('s_barrier')
    if not os.environ.get('RT'): stamp(a, 2)
    a('s_lshr_b32 s56, s25, 2')
    a('s_lshl_b32 s56, s56, 15')
    a('s_add_u32 s56, s56, 98304')
    a('s_lshr_b32 s57, s25, 1')
    a('s_and_b32 s57, s57, 1')
    a('s_lshl_b32 s57, s57, 10')
    a('s_add_u32 s56, s56, s57')
    a('s_and_b32 s57, s25, 1')
    a('s_lshl_b32 s57, s57, 14')
    a('s_add_u32 s56, s56, s57')
    a('v_add_u32 v7, s56, v7')
    a('s_mov_b32 s62, 0x%08x' % f32bits(CSC))
    cnt = 0
    for j in range(2):
        for i in range(2):
            accb = ACC + (i*2 + j)*16
            for rr in range(2):
                tb_ = 48 + (cnt % 4)*4; cnt += 1
                for q in range(8):
                    a('v_mul_f32 %s, s62, %s' % (v(accb + 8*rr + q), v(accb + 8*rr + q)))
                for q in range(4):
                    a('v_cvt_pk_bf16_f32 %s, %s, %s' % (v(tb_ + q), v(accb + 8*rr + 2*q), v(accb + 8*rr + 2*q + 1)))
                a('ds_write_b128 v7, %s offset:%d' % (v(tb_, 4), (4*i + 2*rr)*2048 + j*512))
    a('s_waitcnt lgkmcnt(0)')
    a('s_barrier')
    KAD, VAD, LIN, M, L_, TAU = 2, 3, 4, 5, 6, 8
    Q = 16; S = [48, 80]; P = 112; O = 128; FB = 192; NEGM = 224; T = 240
    NFB = 8
    a('s_lshr_b32 s26, s25, 2')
    a('s_and_b32 s27, s25, 3')
    a('v_and_b32 v9, 31, v1')
    a('v_and_b32 v10, 0x13, v9')
    a('v_and_b32 v11, 4, v9')
    a('v_lshlrev_b32 v11, 1, v11')
    a('v_or_b32 v10, v10, v11')
    a('v_and_b32 v11, 8, v9')
    a('v_lshrrev_b32 v11, 1, v11')
    a('v_or_b32 v10, v10, v11')
    a('v_lshlrev_b32 v10, 4, v10')
    a('v_lshrrev_b32 v11, 5, v1')
    a('s_lshl_b32 s56, s26, 16')
    a('v_lshlrev_b32 v12, 10, v11')
    a('v_add_u32 v12, v12, v10')
    a('v_add_u32 %s, s56, v12' % v(KAD))
    a('v_lshlrev_b32 v12, 11, v11')
    a('v_add_u32 v12, v12, v10')
    a('s_add_u32 s57, s56, 32768')
    a('v_add_u32 %s, s57, v12' % v(VAD))
    a('s_lshl_b32 s58, s27, 10')
    a('v_lshlrev_b32 %s, 4, v1' % v(LIN))
    a('v_add_u32 %s, s58, %s' % (v(LIN), v(LIN)))
    a('s_add_u32 s59, s56, s58')
    a('s_lshl_b32 s60, s27, 5')
    a('s_lshl_b32 s61, s26, 6')
    a('s_sub_u32 s60, s60, s61')
    a('v_lshlrev_b32 v12, 3, v11')
    a('v_sub_u32 v12, v9, v12')
    a('v_add_u32 %s, s60, v12' % v(TAU))
    QAD = 9
    a('v_lshlrev_b32 v12, 11, v11')
    a('v_lshlrev_b32 v13, 4, v9')
    a('v_add_u32 v12, v12, v13')
    a('s_lshl_b32 s61, s27, 9')
    a('v_add_u32 %s, s61, v12' % v(QAD))
    a('s_mov_b32 s63, 0')
    a('s_mov_b32 s64, s21')
    a('s_lshl_b32 s65, s20, 20')
    a('s_lshl_b32 s66, s26, 15')
    a('s_add_u32 s65, s65, s66')
    a('v_mov_b32 %s, 0x41000000' % v(T + 3))
    def idx_kv(a, d, l):
        a('s_lshr_b32 s88, s20, 1')
        a('v_lshrrev_b32 %s, 3, %s' % (v(d + 2), v(l)))
        a('v_lshlrev_b32 %s, 4, %s' % (v(d + 2), v(d + 2)))
        a('v_add_u32 %s, s88, %s' % (v(d + 2), v(d + 2)))
        a('v_and_b32 %s, 3, %s' % (v(d + 3), v(d + 2)))
        a('v_lshlrev_b32 %s, 3, %s' % (v(d + 3), v(d + 3)))
        a('v_and_b32 %s, 7, %s' % (v(d), v(l)))
        a('v_add_u32 %s, %s, %s' % (v(d), v(d), v(d + 3)))
        a('v_lshlrev_b32 %s, 3, %s' % (v(d), v(d)))
        a('v_lshrrev_b32 %s, 2, %s' % (v(d + 2), v(d + 2)))
        a('v_add_u32 %s, %s, %s' % (v(d), v(d), v(d + 2)))
        a('v_add_u32 %s, %d, %s' % (v(d), F1, v(d)))
    fz_wait(a, 16, idx_kv, tmp=10)
    stamp(a, 3)
    a.label('L_at_tile')
    a('s_mul_i32 s66, s63, 32768')
    a('s_add_u32 s66, s66, 98304')
    a('v_add_u32 v12, s66, %s' % v(QAD))
    for ks in range(8):
        a('ds_read_b128 %s, v12 offset:%d' % (v(Q + 4*ks, 4), ks*4096))
    a('s_waitcnt lgkmcnt(0)')
    a('s_barrier')
    a('s_add_u32 s67, s64, 1')
    a('s_lshl_b32 s73, s64, 16')
    a('s_add_u32 s73, s73, s65')
    def dmaK(jreg_off, slot):
        L = []
        for j in range(4):
            L.append(['s_add_u32 m0, s59, %d' % (slot*16384 + j*4096),
                      's_add_u32 s54, %s, %d' % (jreg_off, j*4096),
                      'buffer_load_dwordx4 %s, s[36:39], s54 offen lds' % v(LIN)])
        return L
    def dmaV(jreg_off, slot):
        L = []
        for j in range(4):
            L.append(['s_add_u32 m0, s59, %d' % (32768 + slot*16384 + j*4096),
                      's_add_u32 s54, %s, %d' % (jreg_off, 16384 + j*4096),
                      'buffer_load_dwordx4 %s, s[36:39], s54 offen lds' % v(LIN)])
        return L
    flat = lambda L: [x for y in L for x in y]
    for x in flat(dmaK('s65', 0)): a(x)
    a('s_add_u32 s68, s65, 65536')
    a('s_min_u32 s68, s68, s73')
    for x in flat(dmaK('s68', 1)): a(x)
    for x in flat(dmaV('s65', 0)): a(x)
    a('v_mov_b32 %s, 0' % v(L_))
    for r in range(64): a('v_mov_b32 %s, 0' % v(O + r))
    def qk(slot_imm, Sb, first=False):
        reads = []; mf = []
        for kb in range(2):
            for ks in range(8):
                i = len(reads)
                fb = FB + 4*(i % NFB)
                reads.append('ds_read_b128 %s, %s offset:%d' % (v(fb, 4), v(KAD), slot_imm + ks*2048 + kb*512))
                acc = v(Sb + 16*kb, 16)
                c0 = '0' if first else v(NEGM, 16)
                mf.append(('v_mfma_f32_32x32x16_bf16 %s, %s, %s, %s' % (acc, v(fb, 4), v(Q + 4*ks, 4), acc if ks else c0), i))
        return reads, mf
    def pv(slot_imm, base=0):
        reads = []; mf = []
        for ks in range(4):
            for db in range(4):
                i = len(reads) + base
                fb = FB + 4*(i % NFB)
                reads.append('ds_read_b128 %s, %s offset:%d' % (v(fb, 4), v(VAD), slot_imm + ks*4096 + db*512))
                acc = v(O + 16*db, 16)
                mf.append(('v_mfma_f32_32x32x16_bf16 %s, %s, %s, %s' % (acc, v(fb, 4), v(P + 4*ks, 4), acc), i))
        return reads, mf
    def mask(Sb):
        L = []
        L.append('v_mov_b32 %s, 0xff800000' % v(T + 1))
        for kb in range(2):
            for r in range(16):
                c = 32*kb + 16*(r >> 3) + (r & 7)
                L.append('v_cmp_le_i32 vcc, %d, %s' % (c, v(TAU)))
                L.append('v_cndmask_b32 %s, %s, %s, vcc' % (v(Sb + 16*kb + r), v(T + 1), v(Sb + 16*kb + r)))
        return L
    def maxpart(Sb):
        L = []
        L.append('v_max3_f32 %s, %s, %s, %s' % (v(T), v(Sb), v(Sb + 1), v(Sb + 2)))
        L.append('v_max3_f32 %s, %s, %s, %s' % (v(T + 2), v(Sb + 3), v(Sb + 4), v(Sb + 5)))
        r = 6; tog = 0
        while r + 1 < 32:
            d = T if tog == 0 else T + 2
            L.append('v_max3_f32 %s, %s, %s, %s' % (v(d), v(d), v(Sb + r), v(Sb + r + 1)))
            r += 2; tog ^= 1
        L.append('v_max_f32 %s, %s, %s' % (v(T), v(T), v(T + 2)))
        L.append('v_mov_b32 %s, %s' % (v(T + 2), v(T)))
        L.append('v_permlane32_swap_b32 %s, %s' % (v(T), v(T + 2)))
        L.append('v_max_f32 %s, %s, %s' % (v(T), v(T), v(T + 2)))
        return L
    def rescale(lbl, Sb):
        a('v_cmp_lt_f32 vcc, %s, %s' % (v(T + 3), v(T)))
        a('s_cbranch_vccz %s' % lbl)
        a('v_max_f32 %s, 0, %s' % (v(T), v(T)))
        a('v_sub_f32 %s, 0, %s' % (v(T + 2), v(T)))
        a('v_exp_f32 %s, %s' % (v(T + 2), v(T + 2)))
        for r in range(32):
            a('v_sub_f32 %s, %s, %s' % (v(Sb + r), v(Sb + r), v(T)))
        for r in range(16):
            a('v_sub_f32 %s, %s, %s' % (v(NEGM + r), v(NEGM + r), v(T)))
        a('v_mul_f32 %s, %s, %s' % (v(L_), v(L_), v(T + 2)))
        for r in range(64):
            a('v_mul_f32 %s, %s, %s' % (v(O + r), v(O + r), v(T + 2)))
        a.label(lbl)
    def exppart(Sb):
        L = []
        for ks in range(4):
            kb = ks >> 1; r0 = 8*(ks & 1)
            for q in range(4):
                r = Sb + 16*kb + r0 + 2*q
                L.append('v_exp_f32 %s, %s' % (v(r), v(r)))
                L.append('v_exp_f32 %s, %s' % (v(r + 1), v(r + 1)))
                L.append('v_add_f32 %s, %s, %s' % (v(L_), v(L_), v(r)))
                L.append('v_cvt_pk_bf16_f32 %s, %s, %s' % (v(P + 4*ks + q), v(r), v(r + 1)))
                L.append('v_add_f32 %s, %s, %s' % (v(L_), v(L_), v(r + 1)))
        return L
    def mix(dm, ex, every):
        out = []; d = 0
        for k, x in enumerate(ex):
            if k % every == 0 and d < len(dm):
                out += dm[d]; d += 1
            out.append(x)
        for y in dm[d:]: out += y
        return out
    PRE = 4
    a('s_waitcnt vmcnt(8)')
    a('s_barrier')
    rd, mf = qk(0, S[0], first=True)
    st = Stream(a, rd, 6)
    st.seg(mf, [])
    a('s_cmp_eq_u32 s67, 1')
    a('s_cbranch_scc0 L_at_nomask0')
    for x in mask(S[0]): a(x)
    a.label('L_at_nomask0')
    for x in maxpart(S[0]): a(x)
    a('v_max_f32 %s, 0x%08x, %s' % (v(T), f32bits(-1e30), v(T)))
    for r in range(32):
        a('v_sub_f32 %s, %s, %s' % (v(S[0] + r), v(S[0] + r), v(T)))
    for r in range(16):
        a('v_sub_f32 %s, 0, %s' % (v(NEGM + r), v(T)))
    a('v_mov_b32 %s, 0' % v(T))
    a('s_mov_b32 s69, 0')
    a('s_add_u32 s70, s65, 65536')
    a('s_waitcnt vmcnt(0)')
    a('s_barrier')
    rdn, _ = qk(16384, S[1])
    for x in rdn[:PRE]: a(x)
    for par in range(2):
        a.label('L_at_loop%d' % par)
        a('s_add_u32 s71, s69, 1')
        a('s_cmp_eq_u32 s71, s67')
        a('s_cbranch_scc1 L_at_last%d' % par)
        a('s_add_u32 s72, s70, 65536')
        a('s_min_u32 s72, s72, s73')
        a('s_add_u32 s71, s69, 2')
        dm = dmaK('s72', par) + dmaV('s70', par ^ 1)
        rescale('L_at_rs%d' % par, S[par])
        rdk, mfk = qk((par ^ 1)*16384, S[par ^ 1])
        rdv, mfv = pv(par*16384, 16)
        st = Stream(a, rdk + rdv, 6, pre=PRE)
        ex = exppart(S[par])
        if os.environ.get('X_NOEXP'): ex = ['s_nop 0']*80
        if os.environ.get('X_NODMA'): dm = []
        if os.environ.get('X_NOLDS'):
            st.reads = [x if (k % 2 == 0 or k < 8) else 's_nop 0' for k, x in enumerate(st.reads)]
        st.seg(mfk, mix(dm, ex[:50], 4))
        st.seg(mfv[:8], ex[50:])
        a('s_cmp_eq_u32 s71, s67')
        a('s_cbranch_scc0 L_at_nomask%d' % (par + 1))
        for x in mask(S[par ^ 1]): a(x)
        a.label('L_at_nomask%d' % (par + 1))
        st.seg(mfv[8:12], maxpart(S[par ^ 1]))
        a('s_waitcnt vmcnt(0) lgkmcnt(0)')
        a('s_barrier')
        st.waited = 10**6
        rdn, _ = qk(par*16384, S[par])
        fill = rdn[:PRE]
        st.seg(mfv[12:], fill)
        a('s_add_u32 s69, s69, 1')
        a('s_mov_b32 s70, s72')
        if par == 1:
            a('s_branch L_at_loop0')
    for par in range(2):
        a.label('L_at_last%d' % par)
        rescale('L_at_rsl%d' % par, S[par])
        ex = exppart(S[par])
        rd, mf = pv(par*16384, 4)
        st = Stream(a, [None]*4 + rd, 10, pre=4)
        for x in ex[:20]: a(x)
        st.seg(mf[:4], ex[20:40])
        st.seg(mf[4:8], ex[40:60])
        st.seg(mf[8:12], ex[60:])
        st.seg(mf[12:], [])
        if par == 0:
            a('s_branch L_at_comb')
    a.label('L_at_comb')
    if STAMPS:
        a('s_cmp_eq_u32 s63, 0')
        a('s_cbranch_scc0 L_st1')
        stamp(a, 4)
        a('s_branch L_st2')
        a.label('L_st1')
        stamp(a, 6)
        a.label('L_st2')
    a('v_sub_f32 %s, 0, %s' % (v(M), v(NEGM)))
    a('v_mov_b32 %s, %s' % (v(T), v(L_)))
    a('v_permlane32_swap_b32 %s, %s' % (v(L_), v(T)))
    a('v_add_f32 %s, %s, %s' % (v(L_), v(L_), v(T)))
    a('s_barrier')
    a('s_mul_i32 s56, s25, 8704')
    a('v_lshlrev_b32 v12, 2, v1')
    a('v_add_u32 v12, s56, v12')
    a('ds_write_b32 v12, %s offset:8192' % v(M))
    a('ds_write_b32 v12, %s offset:8448' % v(L_))
    a('v_lshlrev_b32 v13, 4, v1')
    a('v_add_u32 v13, s56, v13')
    a('s_cmp_eq_u32 s26, 0')
    a('s_cbranch_scc0 L_at_cw1')
    for q in range(8):
        a('ds_write_b128 v13, %s offset:%d' % (v(O + 32 + 4*q, 4), q*1024))
    a('s_branch L_at_cw2')
    a.label('L_at_cw1')
    for q in range(8):
        a('ds_write_b128 v13, %s offset:%d' % (v(O + 4*q, 4), q*1024))
    a.label('L_at_cw2')
    a('s_waitcnt lgkmcnt(0)')
    a('s_barrier')
    a('s_xor_b32 s57, s25, 4')
    a('s_mul_i32 s57, s57, 8704')
    a('v_lshlrev_b32 v12, 2, v1')
    a('v_add_u32 v12, s57, v12')
    a('v_lshlrev_b32 v13, 4, v1')
    a('v_add_u32 v13, s57, v13')
    a('ds_read_b32 %s, v12 offset:8192' % v(T))
    a('ds_read_b32 %s, v12 offset:8448' % v(T + 1))
    PB = 48
    for q in range(8):
        a('ds_read_b128 %s, v13 offset:%d' % (v(PB + 4*q, 4), q*1024))
    a('s_waitcnt lgkmcnt(8)')
    a('v_max_f32 %s, %s, %s' % (v(T + 2), v(T), v(M)))
    a('v_sub_f32 %s, %s, %s' % (v(T + 4), v(M), v(T + 2)))
    a('v_sub_f32 %s, %s, %s' % (v(T + 5), v(T), v(T + 2)))
    a('v_exp_f32 %s, %s' % (v(T + 4), v(T + 4)))
    a('v_exp_f32 %s, %s' % (v(T + 5), v(T + 5)))
    a('v_mul_f32 %s, %s, %s' % (v(T + 6), v(L_), v(T + 4)))
    a('v_fmac_f32 %s, %s, %s' % (v(T + 6), v(T + 1), v(T + 5)))
    a('v_rcp_f32 %s, %s' % (v(T + 6), v(T + 6)))
    a('v_mul_f32 %s, %s, %s' % (v(T + 4), v(T + 4), v(T + 6)))
    a('v_mul_f32 %s, %s, %s' % (v(T + 5), v(T + 5), v(T + 6)))
    a('s_waitcnt lgkmcnt(0)')
    a('s_lshl_b32 s56, s64, 9')
    a('s_lshl_b32 s57, s20, 4')
    a('s_add_u32 s56, s56, s57')
    a('s_lshl_b32 s57, s26, 3')
    a('s_add_u32 s56, s56, s57')
    a('s_lshl_b32 s56, s56, 11')
    a('s_lshl_b32 s57, s27, 9')
    a('s_add_u32 s56, s56, s57')
    a('v_lshrrev_b32 v12, 5, v1')
    a('v_lshlrev_b32 v12, 11, v12')
    a('v_and_b32 v13, 31, v1')
    a('v_lshlrev_b32 v13, 4, v13')
    a('v_add_u32 v12, v12, v13')
    a('v_add_u32 v12, s56, v12')
    a('s_cmp_eq_u32 s26, 0')
    a('s_cbranch_scc0 L_at_fin1')
    for gsel in range(2):
        if gsel == 1: a.label('L_at_fin1')
        own = O + 32*gsel
        for r in range(32):
            a('v_mul_f32 %s, %s, %s' % (v(own + r), v(own + r), v(T + 4)))
            a('v_fmac_f32 %s, %s, %s' % (v(own + r), v(PB + r), v(T + 5)))
        for dbl in range(2):
            for rr in range(2):
                tb_ = 80 + (dbl*2 + rr)*4
                for q in range(4):
                    a('v_cvt_pk_bf16_f32 %s, %s, %s' % (v(tb_ + q), v(own + 16*dbl + 8*rr + 2*q), v(own + 16*dbl + 8*rr + 2*q + 1)))
                a('s_mov_b32 s60, %d' % ((4*dbl + 2*rr)*2048))
                a('buffer_store_dwordx4 %s, v12, s[40:43], s60 offen' % v(tb_, 4))
        if gsel == 0: a('s_branch L_at_fin2')
    a.label('L_at_fin2')
    a('s_barrier')
    if FZ.on:
        a('s_cmp_eq_u32 s63, 0')
        a('s_cbranch_scc0 L_at_sigB')
        fz_signal(a, F2A)
        a('s_branch L_at_sigD')
        a.label('L_at_sigB')
        fz_signal(a, F2B)
        a.label('L_at_sigD')
    if STAMPS:
        a('s_cmp_eq_u32 s63, 0')
        a('s_cbranch_scc0 L_st3')
        stamp(a, 5)
        a.label('L_st3')
    a('s_add_u32 s63, s63, 1')
    a('s_mov_b32 s64, s22')
    a('s_cmp_lt_u32 s63, 2')
    a('s_cbranch_scc1 L_at_tile')
    stamp(a, 7)
    if os.environ.get('RT'):
        a('s_memrealtime s[84:85]'); a('s_waitcnt lgkmcnt(0)')
    rtstamp(a, 9); stamp_flush(a, 1, 8)
    a.label('L_at_end')
    if not FZ.on: a('s_endpgm')
    return name, 256, (256, 512, 163840)
```

```python
import os, sys, struct
from asmlib import *

NAME = 'sequential_preLN__compressed_kv_cla__dense_activation_gelu__prompt'

WS_XN   = 0x0000000
WS_KV   = 0x0400000
WS_CTX  = 0x2800000
WS_PART = 0x3C00000
WS_H    = 0x5400000
WS_HN   = 0x5800000
WS_G    = 0x5C00000
WS_ST   = 0x6400000
WS_CS   = 0x6480000
WS_END  = 0x6500000

KA_X, KA_CKV, KA_WQ, KA_WUK, KA_WUV, KA_WO, KA_BX, KA_W1, KA_B1, KA_W2, KA_B2, KA_OUT, KA_DBG, KA_WS = [8*i for i in range(14)]

def srd(a, sreg, lo, hi, nbytes, add=0):
    if add:
        a('s_add_u32 %s, %s, 0x%x' % (s(sreg), s(lo), add))
        a('s_addc_u32 %s, %s, 0' % (s(sreg+1), s(hi)))
    else:
        a('s_mov_b32 %s, %s' % (s(sreg), s(lo)))
        a('s_mov_b32 %s, %s' % (s(sreg+1), s(hi)))
    a('s_mov_b32 %s, 0x%x' % (s(sreg+2), nbytes))
    a('s_mov_b32 %s, 0x00020000' % s(sreg+3))

def kernel_header(a, name):
    a.raw('.globl %s' % name)
    a.raw('.p2align 8')
    a.raw('.type %s,@function' % name)
    a.label(name)

def kernel_desc(name, vgpr, sgpr=102):
    acc = (vgpr + 3) // 4 * 4
    return '''.p2align 6
.amdhsa_kernel %s
  .amdhsa_next_free_vgpr %d
  .amdhsa_next_free_sgpr %d
  .amdhsa_accum_offset %d
  .amdhsa_group_segment_fixed_size 0
  .amdhsa_kernarg_size 112
  .amdhsa_user_sgpr_count 2
  .amdhsa_user_sgpr_kernarg_segment_ptr 1
  .amdhsa_system_sgpr_workgroup_id_x 1
.end_amdhsa_kernel
''' % (name, vgpr, sgpr, acc)

def wave_sum(a, vr, tmp):
    a('v_add_f32_dpp %s, %s, %s quad_perm:[1,0,3,2] row_mask:0xf bank_mask:0xf' % (v(vr), v(vr), v(vr)))
    a('v_add_f32_dpp %s, %s, %s quad_perm:[2,3,0,1] row_mask:0xf bank_mask:0xf' % (v(vr), v(vr), v(vr)))
    a('v_add_f32_dpp %s, %s, %s row_half_mirror row_mask:0xf bank_mask:0xf' % (v(vr), v(vr), v(vr)))
    a('v_add_f32_dpp %s, %s, %s row_mirror row_mask:0xf bank_mask:0xf' % (v(vr), v(vr), v(vr)))
    a('v_mov_b32 %s, %s' % (v(tmp), v(vr)))
    a('v_permlane16_swap_b32 %s, %s' % (v(vr), v(tmp)))
    a('v_add_f32 %s, %s, %s' % (v(vr), v(vr), v(tmp)))
    a('v_mov_b32 %s, %s' % (v(tmp), v(vr)))
    a('v_permlane32_swap_b32 %s, %s' % (v(vr), v(tmp)))
    a('v_add_f32 %s, %s, %s' % (v(vr), v(vr), v(tmp)))

def layernorm_row(a, d0, has2, tmp, eps_s):
    f = tmp
    for r in range(8):
        a('v_lshlrev_b32 %s, 16, %s' % (v(f + 2*r), v(d0 + r)))
        a('v_and_b32 %s, 0xffff0000, %s' % (v(f + 2*r + 1), v(d0 + r)))
    sm = tmp + 16; t2 = tmp + 17; t3 = tmp + 18; msk = tmp + 19
    a('v_add_f32 %s, %s, %s' % (v(sm), v(f), v(f+1)))
    for r in range(2, 16):
        a('v_add_f32 %s, %s, %s' % (v(sm), v(sm), v(f + r)))
    wave_sum(a, sm, t2)
    a('v_mul_f32 %s, 0x%08x, %s' % (v(sm), f32bits(1.0/640), v(sm)))
    for r in range(16):
        a('v_sub_f32 %s, %s, %s' % (v(f + r), v(f + r), v(sm)))
    for r in range(8, 16):
        a('v_mul_f32 %s, %s, %s' % (v(f + r), v(f + r), v(msk)))
    a('v_mul_f32 %s, %s, %s' % (v(sm), v(f), v(f)))
    for r in range(1, 16):
        a('v_fmac_f32 %s, %s, %s' % (v(sm), v(f + r), v(f + r)))
    wave_sum(a, sm, t2)
    a('v_mov_b32 %s, 0x%08x' % (v(t3), f32bits(1e-5)))
    a('v_fmac_f32 %s, 0x%08x, %s' % (v(t3), f32bits(1.0/640), v(sm)))
    a('v_rsq_f32 %s, %s' % (v(t3), v(t3)))
    for r in range(16):
        a('v_mul_f32 %s, %s, %s' % (v(f + r), v(f + r), v(t3)))
    for r in range(8):
        a('v_cvt_pk_bf16_f32 %s, %s, %s' % (v(d0 + r), v(f + 2*r), v(f + 2*r + 1)))

import struct
def f32bits(x):
    return struct.unpack('<I', struct.pack('<f', x))[0]


STAMPS = bool(os.environ.get('STAMPS'))
WS_DBG = 0x8000000
def stamp(a, i):
    if not STAMPS: return
    a('s_memtime s[%d:%d]' % (80 + 2*i, 81 + 2*i))
    a('s_waitcnt lgkmcnt(0)')
def rtstamp(a, i):
    if not STAMPS: return
    a('s_memrealtime s[%d:%d]' % (80 + 2*i, 81 + 2*i))
    a('s_waitcnt lgkmcnt(0)')
def stamp_flush(a, kidx, n, wsreg=12):
    n = 10
    if not STAMPS: return
    srd(a, 76, wsreg, wsreg + 1, 16 << 20, WS_DBG)
    a('v_lshrrev_b32 v250, 6, v0') if False else None
    a('s_lshl_b32 s75, s2, 4')
    a('s_add_u32 s75, s75, s25')
    a('s_lshl_b32 s75, s75, 7')
    a('s_add_u32 s75, s75, %d' % (kidx << 20))
    a('v_mov_b32 v100, 0')
    for i in range(n):
        a('v_mov_b32 v102, s%d' % (80 + 2*i))
        a('v_mov_b32 v103, s%d' % (81 + 2*i))
        a('buffer_store_dwordx2 v[102:103], v100, s[76:79], s75 offen offset:%d' % (i*8))

def prefetch_arrays(a, arrays, tag, vdst, vtmp, lane):
    a('s_lshl_b32 s84, s2, 3')
    a('s_add_u32 s84, s84, s25')
    start = 0
    for n, (ka, nbytes) in enumerate(arrays):
        nw = (nbytes + 8191)//8192
        lbl = 'L_pf_%s_%d' % (tag, n)
        a('s_cmp_lt_u32 s84, %d' % (start + nw))
        a('s_cbranch_scc0 %s' % lbl)
        if start:
            a('s_cmp_ge_u32 s84, %d' % start)
            a('s_cbranch_scc0 %s' % lbl)
        a('s_load_dwordx2 s[86:87], s[0:1], %d' % ka)
        a('s_sub_u32 s85, s84, %d' % start)
        a('s_lshl_b32 s85, s85, 13')
        a('v_lshlrev_b32 %s, 7, %s' % (v(vtmp), v(lane)))
        a('s_waitcnt lgkmcnt(0)')
        a('s_mov_b32 s76, s86'); a('s_mov_b32 s77, s87'); a('s_mov_b32 s78, 0x%x' % nbytes); a('s_mov_b32 s79, 0x00020000')
        a('buffer_load_dword %s, %s, s[76:79], s85 offen' % (v(vdst), v(vtmp)))
        a.label(lbl)
        start += nw

WS_FLAG = 0x7000000
F1, F2A, F2B, F3, F4, F5 = 0, 256, 512, 768, 1024, 1280
class FZ: on = False
SPIN_LIMIT = 400000

def fz_prologue(a):
    a('s_load_dwordx2 s[88:89], s[0:1], %d' % KA_DBG)
    a('s_load_dwordx2 s[90:91], s[0:1], %d' % KA_WS)
    a('s_memrealtime s[100:101]')
    a('v_lshrrev_b32 v2, 6, v0')
    a('v_readfirstlane_b32 s25, v2')
    a('s_waitcnt lgkmcnt(0)')
    a('s_or_b32 s100, s100, 1')
    srd(a, 96, 90, 91, 65536, WS_FLAG)
    a('s_cmp_eq_u32 s25, 0')
    a('s_cbranch_scc0 L_fz_p1')
    srd(a, 92, 88, 89, 256)
    a('s_mov_b64 exec, 1')
    a('v_mov_b32 v4, s100'); a('v_mov_b32 v5, s101'); a('v_mov_b32 v6, 0'); a('v_mov_b32 v7, 0'); a('v_mov_b32 v8, 0')
    a('buffer_atomic_cmpswap_x2 v[4:7], v8, s[92:95], 0 offen sc0 sc1')
    a('s_waitcnt vmcnt(0)')
    a('v_readfirstlane_b32 s88, v4'); a('v_readfirstlane_b32 s89, v5')
    a('s_mov_b64 exec, -1')
    a('s_cmp_eq_u64 s[88:89], 0')
    a('s_cselect_b32 s100, s100, s88')
    a('s_cselect_b32 s101, s101, s89')
    a.label('L_fz_p1')

_fzc = [0]
def fz_signal(a, base, idx_s=None):
    if not FZ.on: return
    _fzc[0] += 1; l = 'L_fz_s%d' % _fzc[0]
    a('s_waitcnt vmcnt(0)')
    a('s_barrier')
    a('s_cmp_eq_u32 s25, 0')
    a('s_cbranch_scc0 %s' % l)
    a('s_lshl_b32 s88, s2, 3')
    a('s_add_u32 s88, s88, %d' % (base*8))
    a('s_mov_b64 exec, 1')
    a('v_mov_b32 v248, s100'); a('v_mov_b32 v249, s101'); a('v_mov_b32 v250, 0')
    a('buffer_store_dwordx2 v[248:249], v250, s[96:99], s88 offen sc0 sc1')
    a('s_mov_b64 exec, -1')
    a.label(l)

def fz_wait(a, nflags, idx_code, tmp=4):
    if not FZ.on: return
    _fzc[0] += 1; l = 'L_fz_w%d' % _fzc[0]
    a('s_cmp_eq_u32 s25, 0')
    a('s_cbranch_scc0 %sd' % l)
    a('v_and_b32 %s, 63, v0' % v(tmp + 1))
    a('v_min_u32 %s, %d, %s' % (v(tmp + 1), nflags - 1, v(tmp + 1)))
    idx_code(a, tmp, tmp + 1)
    a('v_lshlrev_b32 %s, 3, %s' % (v(tmp), v(tmp)))
    a('s_mov_b32 s88, 0')
    a.label(l)
    a('buffer_load_dwordx2 %s, %s, s[96:99], 0 offen sc0 sc1' % (v(tmp + 2, 2), v(tmp)))
    a('s_waitcnt vmcnt(0)')
    a('v_cmp_eq_u64 vcc, s[100:101], %s' % v(tmp + 2, 2))
    a('s_add_u32 s88, s88, 1')
    a('s_cmp_eq_u64 vcc, exec')
    a('s_cbranch_scc1 %sd' % l)
    a('s_sleep 1')
    a('s_cmp_lt_u32 s88, %d' % SPIN_LIMIT)
    a('s_cbranch_scc1 %s' % l)
    a.label(l + 'd')
    a('s_barrier')
```

```python
from asmlib import *
from common import *

def magic_div(a, dst, src, d, tmp_s):
    m = (1 << 32) // d + 1
    a('s_mov_b32 %s, 0x%x' % (s(tmp_s), m))
    a('v_mul_hi_u32 %s, %s, %s' % (v(dst), s(tmp_s), v(src)))

class G: pass
FOLD = bool(os.environ.get('FOLD'))

def gen_gemm(a, c):
    name = c.name; P = '%s_' % name
    NWC = c.wm*c.wn*c.wk
    NW = 8 if FZ.on else getattr(c, 'NWL', NWC)
    TM = c.BM // c.wm; TN = c.BN // c.wn
    MT = TM // 32; NT = TN // 32
    BK = getattr(c, 'BK', 64)
    KS = (BK//16) // c.wk
    pitch = c.BM*2
    WB = BK*pitch
    XB = (BK//8)*c.BN*16
    STG = WB + XB
    nWblk = WB // 1024; nXblk = XB // 1024
    assert WB % 1024 == 0 and XB % 1024 == 0
    if not FZ.on: kernel_header(a, name)
    a('s_cmp_ge_u32 s2, %d' % c.grid)
    a('s_cbranch_scc1 %send' % P)
    a('s_load_dwordx2 s[4:5], s[0:1], %d' % c.W_ka)
    a('s_load_dwordx2 s[12:13], s[0:1], %d' % KA_WS)
    c.loadargs(a)
    stamp(a, 0)
    rtstamp(a, 8)
    a('v_lshrrev_b32 v2, 6, v0')
    a('v_and_b32 v1, 63, v0')
    a('v_readfirstlane_b32 s25, v2')
    c.decode(a)
    a('s_waitcnt lgkmcnt(0)')
    srd(a, 28, 4, 5, c.W_bytes)
    srd(a, 32, 12, 13, 2048*c.X_nc*16, c.X_ws)
    nblk = nWblk + nXblk
    per = (nblk + NW - 1) // NW
    if pitch % 256 == 0: swz = 'k3'
    elif pitch == 128: swz = 'k1'
    elif pitch % 256 in (64, 192): swz = None
    else: raise ValueError('pitch')
    cpr = pitch // 16
    VD = 8
    a('s_lshl_b32 s53, s25, 10')
    a('v_lshlrev_b32 v3, 4, v1')
    lanes_slots = []
    for j in range(per):
        lo = j*NW; hi_ = j*NW + NW - 1
        kindW = hi_ < nWblk; kindX = lo >= nWblk
        lanes_slots.append('W' if kindW else ('X' if kindX else 'M'))
    def w_voff(dst, j):
        a('s_add_u32 s54, s25, %d' % (j*NW))
        a('s_lshl_b32 s54, s54, 6')
        a('v_add_u32 v4, s54, v1')
        if cpr & (cpr - 1) == 0:
            sh = cpr.bit_length() - 1
            a('v_lshrrev_b32 v5, %d, v4' % sh)
            a('v_and_b32 v6, %d, v4' % (cpr - 1))
        else:
            magic_div(a, 5, 4, cpr, 55)
            a('v_mul_u32_u24 v6, %d, v5' % cpr)
            a('v_sub_u32 v6, v4, v6')
        if swz == 'k3':
            a('v_and_b32 v7, 3, v5'); a('v_lshlrev_b32 v7, 2, v7'); a('v_xor_b32 v6, v6, v7')
        elif swz == 'k1':
            a('v_lshrrev_b32 v7, 1, v5'); a('v_and_b32 v7, 1, v7'); a('v_lshlrev_b32 v7, 2, v7'); a('v_xor_b32 v6, v6, v7')
        a('v_mul_u32_u24 v5, %d, v5' % c.W_pitch) if c.W_pitch < (1 << 16) else None
        a('v_lshlrev_b32 v6, 4, v6')
        a('v_add_u32 %s, v5, v6' % v(dst))
    def x_voff(dst, j):
        a('s_add_u32 s54, s25, %d' % (j*NW - nWblk))
        a('s_lshl_b32 s54, s54, 10')
        a('v_add_u32 v4, s54, v3')
        rowb = c.BN*16
        sh = rowb.bit_length() - 1
        a('v_lshrrev_b32 v5, %d, v4' % sh)
        a('v_and_b32 v6, %d, v4' % (rowb - 1))
        a('v_lshlrev_b32 v5, 11, v5')
        if c.BN > 128:
            a('v_lshrrev_b32 v7, 11, v6')
            a('v_and_b32 v6, 2047, v6')
            a('v_mul_u32_u24 v7, %d, v7' % (c.X_nc*2048))
            a('v_add_u32 v5, v5, v7')
        a('v_add_u32 %s, v5, v6' % v(dst))
    VX = VD + per
    for j, kind in enumerate(lanes_slots):
        if kind == 'W': w_voff(VD + j, j)
        elif kind == 'X': x_voff(VD + j, j)
        else:
            w_voff(VD + j, j); x_voff(VX, j)
    a('s_mul_i32 s51, s22, %d' % c.W_pitch)
    a('s_lshl_b32 s54, s20, 1')
    a('s_add_u32 s51, s51, s54')
    a('s_lshr_b32 s52, s21, 7')
    a('s_mul_i32 s52, s52, %d' % c.X_nc)
    a('s_lshr_b32 s54, s22, 3')
    a('s_add_u32 s52, s52, s54')
    a('s_lshl_b32 s52, s52, 11')
    a('s_and_b32 s54, s21, 127')
    a('s_lshl_b32 s54, s54, 4')
    a('s_add_u32 s52, s52, s54')
    lblc = [0]
    def dma(st):
        buf = (st % c.NSTG)*STG
        L = []
        for j, kind in enumerate(lanes_slots):
            full = (j*NW + NW - 1) < nblk
            def one(k, reg):
                o = []
                o.append('s_add_u32 m0, s53, %d' % (buf + j*NW*1024))
                if k == 'W':
                    o.append('s_add_u32 s54, s51, %d' % (st*BK*c.W_pitch))
                    o.append('buffer_load_dwordx4 %s, s[28:31], s54 offen lds' % v(reg))
                else:
                    o.append('s_add_u32 s54, s52, %d' % (st*(BK//8)*2048))
                    o.append('buffer_load_dwordx4 %s, s[32:35], s54 offen lds' % v(reg))
                return o
            if kind in 'WX' and full:
                L.append(('plain', one(kind, VD + j)))
            else:
                L.append(('cond', j, kind, one('W', VD + j), one('X', VX if kind == 'M' else VD + j)))
        return L
    def emit_dma_items(items, emit):
        for it in items:
            if it[0] == 'plain':
                for x in it[1]: emit(x)
            else:
                _, j, kind, ow, ox = it
                lblc[0] += 1; l1 = '%sd%da' % (P, lblc[0]); l2 = '%sd%db' % (P, lblc[0])
                if kind == 'M':
                    emit('s_cmp_lt_u32 s25, %d' % (nWblk - j*NW))
                    emit('s_cbranch_scc0 %s' % l1)
                    for x in ow: emit(x)
                    emit('s_branch %s' % l2)
                    emit(l1 + ':')
                    if (j*NW + NW - 1) >= nblk:
                        emit('s_cmp_lt_u32 s25, %d' % (nblk - j*NW))
                        emit('s_cbranch_scc0 %s' % l2)
                    for x in ox: emit(x)
                    emit(l2 + ':')
                else:
                    emit('s_cmp_lt_u32 s25, %d' % (nblk - j*NW))
                    emit('s_cbranch_scc0 %s' % l2)
                    for x in (ow if kind == 'W' else ox): emit(x)
                    emit(l2 + ':')
    Dmin = nblk // NW
    def flat_dma(st):
        L = []
        emit_dma_items(dma(st), L.append)
        return L
    if FZ.on: fz_wait(a, c.nwait, c.idx_wait, tmp=40)
    RAMP = getattr(c, 'ramp', 2)
    nissued = min(RAMP, c.NSTG, c.NK)
    for st in range(nissued):
        for x in flat_dma(st): a(x)
    a('s_mov_b32 s56, 0')
    if c.wm == 1:
        a('s_mov_b32 s26, 0'); a('s_mov_b32 s57, s25')
    else:
        a('s_mul_hi_u32 s57, s25, 0x%x' % ((1 << 32)//c.wm + 1))
        a('s_mul_i32 s58, s57, %d' % c.wm)
        a('s_sub_u32 s26, s25, s58')
    assert c.wn & (c.wn - 1) == 0
    a('s_and_b32 s27, s57, %d' % (c.wn - 1))
    a('s_lshr_b32 s24, s57, %d' % (c.wn.bit_length() - 1))
    pi = c.pi
    a('v_and_b32 v4, 3, v1')
    if pi:
        a('v_and_b32 v5, 1, v4'); a('v_lshlrev_b32 v5, 1, v5'); a('v_lshrrev_b32 v6, 1, v4'); a('v_or_b32 v4, v5, v6')
    a('v_lshrrev_b32 v5, 1, v4')
    a('v_and_b32 v4, 1, v4')
    a('v_lshlrev_b32 v4, 3, v4')
    a('v_lshrrev_b32 v6, 4, v1'); a('v_and_b32 v6, 1, v6'); a('v_lshlrev_b32 v6, 1, v6')
    a('v_add_u32 v5, v5, v6')
    a('s_mul_i32 s57, s26, %d' % (MT*4))
    a('v_add_u32 v5, s57, v5')
    a('v_lshrrev_b32 v6, 2, v1'); a('v_and_b32 v6, 3, v6')
    a('v_lshrrev_b32 v7, 5, v1'); a('v_lshlrev_b32 v7, 3, v7'); a('v_add_u32 v7, v7, v6')
    a('s_mul_i32 s57, s24, %d' % (16*KS))
    a('v_add_u32 v7, s57, v7')
    a('v_mul_u32_u24 v7, %d, v7' % pitch)
    a('v_add_u32 v7, v7, v4')
    WA = VX + 1
    if swz is None:
        nwa = 1
        a('v_lshlrev_b32 v5, 4, v5')
        a('v_add_u32 %s, v7, v5' % v(WA))
    else:
        nwa = MT
        if swz == 'k3': a('v_lshlrev_b32 v6, 2, v6')
        else:
            a('v_lshrrev_b32 v6, 1, v6'); a('v_lshlrev_b32 v6, 2, v6')
        for i in range(MT):
            a('v_add_u32 v4, %d, v5' % (4*i))
            a('v_xor_b32 v4, v4, v6')
            a('v_lshlrev_b32 v4, 4, v4')
            a('v_add_u32 %s, v7, v4' % v(WA + i))
    for stg in range(1, c.NSTG):
        for i in range(nwa):
            a('v_add_u32 %s, %d, %s' % (v(WA + stg*nwa + i), stg*STG, v(WA + i)))
    XA = WA + nwa*c.NSTG
    a('v_lshrrev_b32 v4, 5, v1')
    a('s_mul_i32 s57, s24, %d' % (2*KS))
    a('v_add_u32 v4, s57, v4')
    a('v_mul_u32_u24 v4, %d, v4' % (c.BN*16))
    a('v_and_b32 v5, 31, v1'); a('v_lshlrev_b32 v5, 4, v5')
    a('v_add_u32 v4, v4, v5')
    a('s_mul_i32 s57, s27, %d' % (TN*16))
    a('s_add_u32 s57, s57, %d' % WB)
    a('v_add_u32 %s, s57, v4' % v(XA))
    for stg in range(1, c.NSTG):
        a('v_add_u32 %s, %d, %s' % (v(XA + stg), stg*STG, v(XA)))
    nfr = MT*4 + NT*4
    FR = (XA + c.NSTG + 3)//4*4
    ACC = FR + 2*nfr
    nacc = MT*NT*16
    assert ACC + nacc <= 256, (ACC, nacc)
    for r in range(nacc): a('v_mov_b32 %s, 0' % v(ACC + r))
    def reads(st, kk, fs):
        b = st % c.NSTG; base = FR + nfr*fs
        L = []
        for j in range(NT):
            L.append('ds_read_b128 %s, %s offset:%d' % (v(base + MT*4 + 4*j, 4), v(XA + b), kk*2*c.BN*16 + j*512))
        for i in range(MT):
            for T in range(2):
                if swz is None:
                    L.append('ds_read_b64_tr_b16 %s, %s offset:%d' % (v(base + 4*i + 2*T, 2), v(WA + b), (kk*16 + T*4)*pitch + i*64))
                else:
                    L.append('ds_read_b64_tr_b16 %s, %s offset:%d' % (v(base + 4*i + 2*T, 2), v(WA + b*nwa + i), (kk*16 + T*4)*pitch))
        return L
    def mfmas(fs):
        base = FR + nfr*fs
        L = []
        for i in range(MT):
            for j in range(NT):
                acc = v(ACC + (i*NT + j)*16, 16)
                L.append('v_mfma_f32_32x32x16_bf16 %s, %s, %s, %s' % (acc, v(base + 4*i, 4), v(base + MT*4 + 4*j, 4), acc))
        return L
    nm = MT*NT
    def per_for(n): return max(1, (n + nm - 1)//nm)
    stamp(a, 1)
    nissued0 = nissued
    if NWC < NW:
        a('s_cmp_lt_u32 s25, %d' % NWC)
        a('s_cbranch_scc0 %sdmaonly' % P)
    for comp in ([True, False] if NWC < NW else [True]):
        nissued = nissued0
        if not comp: a.label('%sdmaonly' % P)
        a('s_waitcnt vmcnt(%d)' % (Dmin*(nissued - 1)))
        a('s_barrier')
        if comp: stamp(a, 2)
        for _ in range(2):
            if nissued < min(c.NSTG, c.NK):
                for x in flat_dma(nissued): a(x)
                nissued += 1
        if comp:
            for x in reads(0, 0, 0): a(x)
        step = 0
        for st in range(c.NK):
            for kk in range(KS):
                fs = step & 1; step += 1
                if kk < KS - 1:
                    if comp:
                        a('s_waitcnt lgkmcnt(0)')
                        rd = reads(st, kk + 1, fs ^ 1)
                        for x in interleave(mfmas(fs), rd, per=per_for(len(rd))): a(x)
                elif st + 1 < c.NK:
                    rem = nissued - 1 - (st + 1)
                    a('s_waitcnt vmcnt(%d) lgkmcnt(0)' % (Dmin*rem))
                    a('s_barrier')
                    if comp:
                        rd = reads(st + 1, 0, fs ^ 1)
                        for x in interleave(mfmas(fs), rd, per=per_for(len(rd))): a(x)
                    while nissued <= st + c.NSTG and nissued < c.NK:
                        for x in flat_dma(nissued): a(x)
                        nissued += 1
                elif comp:
                    a('s_waitcnt lgkmcnt(0)')
                    for x in mfmas(fs): a(x)
        if comp and NWC < NW:
            a('s_branch %scomp_done' % P)
        if not comp:
            assert c.wk == 1 and not hasattr(c, 'post')
            a('s_branch %sfin2' % P)
            a.label('%scomp_done' % P)
    stamp(a, 3)
    ctx = G(); ctx.ACC = ACC; ctx.MT = MT; ctx.NT = NT; ctx.FR = FR; ctx.TM = TM; ctx.TN = TN; ctx.P = P
    nq = nacc//4
    if c.wk > 1:
        assert c.wk == 2
        a('s_barrier')
        half = NWC // 2
        hq = nq // 2
        a('s_mul_i32 s57, s25, %d' % (hq*1024))
        a('s_add_u32 s58, s25, %d' % half)
        a('s_cmp_ge_u32 s58, %d' % NWC)
        a('s_cselect_b32 s59, %d, 0' % NWC)
        a('s_sub_u32 s58, s58, s59')
        a('s_mul_i32 s58, s58, %d' % (hq*1024))
        a('v_lshlrev_b32 v4, 4, v1')
        a('v_add_u32 v5, s58, v4')
        a('v_add_u32 v4, s57, v4')
        a('s_cmp_lt_u32 s25, %d' % half)
        a('s_cbranch_scc0 %sred1' % P)
        for hsel in range(2):
            if hsel == 1: a.label('%sred1' % P)
            mine = list(range(0, hq)) if hsel == 0 else list(range(hq, nq))
            other = list(range(hq, nq)) if hsel == 0 else list(range(0, hq))
            for n_, q in enumerate(other):
                a('ds_write_b128 v4, %s offset:%d' % (v(ACC + 4*q, 4), n_*1024))
            a('s_waitcnt lgkmcnt(0)')
            a('s_barrier')
            for n_, q in enumerate(mine):
                a('ds_read_b128 %s, v5 offset:%d' % (v(ACC + 4*other[n_], 4), n_*1024))
            a('s_waitcnt lgkmcnt(0)')
            for n_, q in enumerate(mine):
                for e in range(4):
                    a('v_add_f32 %s, %s, %s' % (v(ACC + 4*q + e), v(ACC + 4*q + e), v(ACC + 4*other[n_] + e)))
            stamp(a, 4)
            ctx.quads = mine; ctx.tag = 'h%d' % hsel
            c.epi(a, ctx)
            if hsel == 0: a('s_branch %sfin' % P)
        a.label('%sfin' % P)
        if hasattr(c, 'post'): c.post(a, ctx)
    else:
        ctx.quads = list(range(nq)); ctx.tag = 'h0'
        c.epi(a, ctx)
    stamp(a, 5)
    if STAMPS:
        a('s_waitcnt vmcnt(0)')
        stamp(a, 6)
        rtstamp(a, 9); stamp_flush(a, c.kidx, 7)
    a.label('%sfin2' % P)
    if FZ.on and getattr(c, 'sig', None) is not None: fz_signal(a, c.sig)
    a.label('%send' % P)
    if not FZ.on: a('s_endpgm')
    lds = max(c.NSTG*STG, NWC*(nacc//8)*1024 if c.wk > 1 else 0, 32768 + 4096 if hasattr(c, 'post') else 0)
    return name, getattr(c, "vgpr", 256), (c.grid, 64*NW, lds)

def cfg_oproj():
    c = G(); c.kidx = 2; c.name = 'oproj_kernel'; c.BM = 160; c.BN = 128; c.NK = 16; c.NSTG = 4; c.wm = 1; c.wn = 4; c.wk = 2
    c.W_ka = KA_WO; c.W_pitch = 1280; c.W_bytes = 4096*640*2; c.X_ws = WS_CTX; c.X_nc = 512; c.grid = 256; c.pi = False
    def loadargs(a): pass
    def decode(a):
        a('s_and_b32 s19, s2, 3')
        a('s_lshr_b32 s23, s2, 2'); a('s_and_b32 s23, s23, 1'); a('s_lshl_b32 s23, s23, 3')
        a('s_lshr_b32 s21, s2, 3')
        a('s_and_b32 s24, s21, 3')
        a('s_lshr_b32 s21, s21, 2')
        a('s_add_u32 s23, s23, s21')
        a('s_mul_i32 s20, s24, 160')
        a('s_lshl_b32 s21, s23, 7')
        a('s_lshl_b32 s22, s19, 10')
    def epi(a, x):
        srd(a, 36, 12, 13, 4*2048*640*4, WS_PART)
        a('s_lshr_b32 s57, s21, 7')
        a('s_lshl_b32 s58, s19, 4')
        a('s_add_u32 s57, s57, s58')
        a('s_mul_i32 s57, s57, 160')
        a('s_lshr_b32 s58, s20, 2')
        a('s_add_u32 s57, s57, s58')
        a('s_lshl_b32 s57, s57, 11')
        a('s_lshl_b32 s58, s27, 9')
        a('s_add_u32 s57, s57, s58')
        a('v_lshrrev_b32 v4, 5, v1'); a('v_lshlrev_b32 v4, 11, v4')
        a('v_and_b32 v5, 31, v1'); a('v_lshlrev_b32 v5, 4, v5')
        a('v_add_u32 v4, v4, v5')
        a('v_add_u32 v4, s57, v4')
        for qq in x.quads:
            i, q = divmod(qq, 4)
            a('s_mov_b32 s60, %d' % ((8*i + 2*q)*2048))
            a('buffer_store_dwordx4 %s, v4, s[36:39], s60 offen' % v(x.ACC + i*16 + 4*q, 4))
    def idx_wait(a, d, l):
        a('s_lshr_b32 s88, s21, 7')
        a('s_sub_u32 s89, 15, s88')
        a('s_cmp_lt_u32 s88, 8')
        a('s_cselect_b32 s88, s88, s89')
        a('s_mov_b32 s87, %d' % F2B)
        a('s_cselect_b32 s89, %d, s87' % F2A)
        a('s_lshl_b32 s88, s88, 5')
        a('s_add_u32 s88, s88, s89')
        a('s_lshl_b32 s89, s19, 3')
        a('v_add_u32 %s, s89, %s' % (v(d + 2), v(l)))
        a('v_and_b32 %s, 3, %s' % (v(d), v(d + 2)))
        a('v_lshlrev_b32 %s, 3, %s' % (v(d), v(d)))
        a('v_lshrrev_b32 %s, 2, %s' % (v(d + 2), v(d + 2)))
        a('v_add_u32 %s, %s, %s' % (v(d), v(d), v(d + 2)))
        a('v_add_u32 %s, s88, %s' % (v(d), v(d)))
    c.nwait = 8; c.idx_wait = idx_wait; c.sig = F3
    c.loadargs = loadargs; c.decode = decode; c.epi = epi
    return c


def cfg_oprojF():
    c = G(); c.kidx = 2; c.name = 'oproj_kernel'; c.BM = 160; c.BN = 32; c.BK = 128; c.NK = 32; c.NSTG = 3; c.wm = 5; c.wn = 1; c.wk = 2
    c.vgpr = 128; c.W_ka = KA_WO; c.W_pitch = 1280; c.W_bytes = 4096*640*2; c.X_ws = WS_CTX; c.X_nc = 512; c.grid = 256; c.pi = True
    def loadargs(a):
        a('s_load_dwordx2 s[14:15], s[0:1], %d' % KA_X)
    def decode(a):
        a('s_and_b32 s21, s2, 7'); a('s_lshl_b32 s21, s21, 3')
        a('s_lshr_b32 s20, s2, 3')
        a('s_lshr_b32 s22, s20, 2')
        a('s_add_u32 s21, s21, s22'); a('s_lshl_b32 s21, s21, 5')
        a('s_and_b32 s19, s20, 3'); a('s_mul_i32 s20, s19, 160')
        a('s_mov_b32 s22, 0')
    def epi(a, x):
        srd(a, 36, 14, 15, 2048*640*2)
        srd(a, 44, 12, 13, 2048*640*2, WS_H)
        srd(a, 40, 12, 13, 2048*32, WS_ST)
        a('s_lshl_b32 s57, s26, 5')
        a('s_add_u32 s57, s57, s20')
        a('s_lshl_b32 s58, s57, 1')
        rrs = sorted(set((qq % 4)//2 for qq in x.quads))
        assert len(rrs) == 1
        rr = rrs[0]
        B = x.FR
        a('v_lshrrev_b32 v4, 5, v1')
        a('v_and_b32 v7, 31, v1')
        a('v_add_u32 v5, s21, v7')
        a('v_mul_u32_u24 v5, 1280, v5')
        a('v_lshlrev_b32 v6, 4, v4')
        a('v_add_u32 v5, v5, v6')
        a('buffer_load_dwordx4 %s, v5, s[36:39], s58 offen offset:%d' % (v(B, 4), 32*rr))
        a('s_lshr_b32 s59, s21, 7'); a('s_mul_i32 s59, s59, 80')
        a('s_lshr_b32 s60, s57, 3'); a('s_add_u32 s59, s59, s60'); a('s_lshl_b32 s59, s59, 11')
        a('s_and_b32 s60, s21, 127'); a('s_lshl_b32 s60, s60, 4'); a('s_add_u32 s59, s59, s60')
        a('s_add_u32 s59, s59, %d' % (rr*4096))
        a('v_lshlrev_b32 v6, 11, v4')
        a('v_lshlrev_b32 v5, 4, v7')
        a('v_add_u32 v6, v6, v5')
        ac = x.ACC + 8*rr
        T = 96
        for q in range(4):
            a('v_cvt_pk_bf16_f32 %s, %s, %s' % (v(T + 4 + q), v(ac + 2*q), v(ac + 2*q + 1)))
        a('s_waitcnt vmcnt(0)')
        for e in range(4):
            a('v_lshlrev_b32 %s, 16, %s' % (v(T), v(T + 4 + e)))
            a('v_and_b32 %s, 0xffff0000, %s' % (v(T + 1), v(T + 4 + e)))
            a('v_lshlrev_b32 %s, 16, %s' % (v(T + 2), v(B + e)))
            a('v_and_b32 %s, 0xffff0000, %s' % (v(T + 3), v(B + e)))
            a('v_add_f32 %s, %s, %s' % (v(T), v(T), v(T + 2)))
            a('v_add_f32 %s, %s, %s' % (v(T + 1), v(T + 1), v(T + 3)))
            a('v_cvt_pk_bf16_f32 %s, %s, %s' % (v(T + 8 + e), v(T), v(T + 1)))
        a('buffer_store_dwordx4 %s, v6, s[44:47], s59 offen' % v(T + 8, 4))
        a('v_mov_b32 %s, 0' % v(T + 12)); a('v_mov_b32 %s, 0' % v(T + 13))
        for e in range(4):
            a('v_lshlrev_b32 %s, 16, %s' % (v(T), v(T + 8 + e)))
            a('v_and_b32 %s, 0xffff0000, %s' % (v(T + 1), v(T + 8 + e)))
            a('v_add_f32 %s, %s, %s' % (v(T + 12), v(T + 12), v(T)))
            a('v_fmac_f32 %s, %s, %s' % (v(T + 13), v(T), v(T)))
            a('v_add_f32 %s, %s, %s' % (v(T + 12), v(T + 12), v(T + 1)))
            a('v_fmac_f32 %s, %s, %s' % (v(T + 13), v(T + 1), v(T + 1)))
        for r in (T + 12, T + 13):
            a('v_mov_b32 %s, %s' % (v(T), v(r)))
            a('v_permlane32_swap_b32 %s, %s' % (v(r), v(T)))
            a('v_add_f32 %s, %s, %s' % (v(r), v(r), v(T)))
        a('s_lshl_b32 s60, s25, 8')
        a('v_lshlrev_b32 v5, 3, v7')
        a('v_add_u32 v6, s60, v5')
        a('ds_write_b64 v6, %s offset:32768' % v(T + 12, 2))
        x.post = True
    def post(a, x):
        T = 96
        a('s_waitcnt lgkmcnt(0)')
        a('s_barrier')
        a('s_cmp_eq_u32 s25, 0')
        a('s_cbranch_scc0 %spost' % x.P)
        for w in range(10):
            a('ds_read_b64 %s, v5 offset:%d' % (v(T + 2*w, 2), 32768 + 256*w))
        a('s_waitcnt lgkmcnt(0)')
        for w in range(1, 10):
            a('v_add_f32 %s, %s, %s' % (v(T), v(T), v(T + 2*w)))
            a('v_add_f32 %s, %s, %s' % (v(T + 1), v(T + 1), v(T + 2*w + 1)))
        a('v_add_u32 v6, s21, v7')
        a('v_lshlrev_b32 v6, 5, v6')
        a('s_lshl_b32 s60, s19, 3')
        a('buffer_store_dwordx2 %s, v6, s[40:43], s60 offen' % v(T, 2))
        a.label('%spost' % x.P)
    c.loadargs = loadargs; c.decode = decode; c.epi = epi; c.post = post
    return c

def gelu_ops(a, x, t1, t2):
    k1 = -2*0.7978845608028654*1.4426950408889634
    k2 = k1*0.044715
    a('v_mul_f32 %s, %s, %s' % (v(t1), v(x), v(x)))
    a('v_fma_f32 %s, %s, s62, s63' % (v(t1), v(t1))) if False else None
    a('v_mul_f32 %s, s62, %s' % (v(t1), v(t1)))
    a('v_add_f32 %s, s63, %s' % (v(t1), v(t1)))
    a('v_mul_f32 %s, %s, %s' % (v(t1), v(t1), v(x)))
    a('v_exp_f32 %s, %s' % (v(t1), v(t1)))
    a('v_add_f32 %s, 1.0, %s' % (v(t1), v(t1)))
    a('v_rcp_f32 %s, %s' % (v(t1), v(t1)))
    a('v_mul_f32 %s, %s, %s' % (v(x), v(x), v(t1)))

def cfg_ffn1():
    c = G(); c.kidx = 4; c.name = 'ffn1_kernel'; c.BM = 64; c.BN = 256; c.NK = 10; c.NSTG = 4; c.wm = 1; c.wn = 4; c.wk = 2
    c.W_ka = KA_W1; c.W_pitch = 3456; c.W_bytes = 640*1728*2; c.X_ws = WS_H if FOLD else WS_HN; c.X_nc = 80; c.grid = 216; c.pi = True
    def loadargs(a):
        a('s_load_dwordx2 s[14:15], s[0:1], %d' % KA_B1)
    def decode(a):
        a('s_and_b32 s21, s2, 7'); a('s_lshl_b32 s21, s21, 8')
        a('s_lshr_b32 s20, s2, 3'); a('s_lshl_b32 s20, s20, 6')
        a('s_mov_b32 s22, 0')
    def epi(a, x):
        srd(a, 36, 12, 13, 2048*1728*2, WS_G)
        srd(a, 40, 14, 15, 1728*2)
        k1 = -2*0.7978845608028654*1.4426950408889634
        a('v_mov_b32 v6, 0x%08x' % f32bits(k1*0.044715))
        a('s_mov_b32 s63, 0x%08x' % f32bits(k1))
        a('v_lshrrev_b32 v4, 5, v1')
        a('v_lshlrev_b32 v5, 4, v4')
        a('s_lshl_b32 s57, s20, 1')
        B = x.FR
        units = sorted(set((qq//4//x.NT, (qq//4) % x.NT, (qq % 4)//2) for qq in x.quads))
        irs = sorted(set((i, rr) for (i, j, rr) in units))
        for (i, rr) in irs:
            a('buffer_load_dwordx4 %s, v5, s[40:43], s57 offen offset:%d' % (v(B + (i*2 + rr)*4, 4), (32*i + 16*rr)*2))
        a('s_lshl_b32 s58, s27, 6')
        a('s_add_u32 s58, s58, s21')
        if FOLD:
            srd(a, 44, 12, 13, 2048*32, WS_ST)
            srd(a, 48, 12, 13, 1728*4, WS_CS)
            CSR = 200; STR = 216
            a('v_lshlrev_b32 v7, 5, v4')
            a('s_lshl_b32 s61, s20, 2')
            for n_, (i, rr) in enumerate(irs):
                for hh in range(2):
                    a('buffer_load_dwordx4 %s, v7, s[48:51], s61 offen offset:%d' % (v(CSR + n_*8 + hh*4, 4), (32*i + 16*rr)*4 + hh*16))
            a('v_and_b32 v7, 31, v1')
            a('v_add_u32 v7, s58, v7')
            a('v_lshlrev_b32 v7, 5, v7')
            for j in range(x.NT):
                for hh in range(2):
                    a('buffer_load_dwordx4 %s, v7, s[44:47], 0 offen offset:%d' % (v(STR + j*8 + hh*4, 4), j*1024 + hh*16))
        a('s_lshr_b32 s59, s58, 7')
        a('s_mul_i32 s59, s59, 216')
        a('s_lshr_b32 s60, s20, 3')
        a('s_add_u32 s59, s59, s60')
        a('s_lshl_b32 s59, s59, 11')
        a('s_and_b32 s58, s58, 127')
        a('s_lshl_b32 s58, s58, 4')
        a('s_add_u32 s59, s59, s58')
        a('v_lshlrev_b32 v4, 11, v4')
        a('v_and_b32 v5, 31, v1'); a('v_lshlrev_b32 v5, 4, v5')
        a('v_add_u32 v4, v4, v5')
        a('v_add_u32 v4, s59, v4')
        a('s_waitcnt vmcnt(0)')
        T = B + 16
        cnt = 0
        if FOLD:
            MU = 232; RS = 236
            for j in range(x.NT):
                b0 = STR + j*8
                a('v_add_f32 %s, %s, %s' % (v(b0), v(b0), v(b0 + 2)))
                a('v_add_f32 %s, %s, %s' % (v(b0 + 4), v(b0 + 4), v(b0 + 6)))
                a('v_add_f32 %s, %s, %s' % (v(b0 + 1), v(b0 + 1), v(b0 + 3)))
                a('v_add_f32 %s, %s, %s' % (v(b0 + 5), v(b0 + 5), v(b0 + 7)))
                a('v_add_f32 %s, %s, %s' % (v(b0), v(b0), v(b0 + 4)))
                a('v_add_f32 %s, %s, %s' % (v(b0 + 1), v(b0 + 1), v(b0 + 5)))
                a('v_mul_f32 %s, 0x%08x, %s' % (v(MU + j), f32bits(1.0/640), v(b0)))
                a('v_mul_f32 %s, 0x%08x, %s' % (v(b0 + 1), f32bits(1.0/640), v(b0 + 1)))
                a('v_fma_f32 %s, -%s, %s, %s' % (v(b0 + 1), v(MU + j), v(MU + j), v(b0 + 1)))
                a('v_max_f32 %s, 0, %s' % (v(b0 + 1), v(b0 + 1)))
                a('v_add_f32 %s, 0x%08x, %s' % (v(b0 + 1), f32bits(1e-5), v(b0 + 1)))
                a('v_rsq_f32 %s, %s' % (v(RS + j), v(b0 + 1)))
        for (i, rr) in irs:
            bb = B + (i*2 + rr)*4
            for e in range(4):
                a('v_lshlrev_b32 %s, 16, %s' % (v(T + 2*e), v(bb + e)))
                a('v_and_b32 %s, 0xffff0000, %s' % (v(T + 2*e + 1), v(bb + e)))
            for (i2, j, rr2) in units:
                if (i2, rr2) != (i, rr): continue
                ac = x.ACC + (i*x.NT + j)*16 + 8*rr
                for e in range(8):
                    if FOLD:
                        cs = CSR + irs.index((i, rr))*8 + e
                        a('v_fma_f32 %s, -%s, %s, %s' % (v(ac + e), v(MU + j), v(cs), v(ac + e)))
                        a('v_fma_f32 %s, %s, %s, %s' % (v(ac + e), v(ac + e), v(RS + j), v(T + e)))
                    else:
                        a('v_add_f32 %s, %s, %s' % (v(ac + e), v(ac + e), v(T + e)))
                tmp = [T + 8, T + 9, T + 10, T + 11]
                for e0 in range(0, 8, 4):
                    es = list(range(e0, e0 + 4))
                    for n_, e in enumerate(es): a('v_mul_f32 %s, %s, %s' % (v(tmp[n_]), v(ac + e), v(ac + e)))
                    for n_, e in enumerate(es): a('v_fmaak_f32 %s, v6, %s, 0x%08x' % (v(tmp[n_]), v(tmp[n_]), f32bits(k1)))
                    for n_, e in enumerate(es): a('v_mul_f32 %s, %s, %s' % (v(tmp[n_]), v(tmp[n_]), v(ac + e)))
                    for n_, e in enumerate(es): a('v_exp_f32 %s, %s' % (v(tmp[n_]), v(tmp[n_])))
                    for n_, e in enumerate(es): a('v_add_f32 %s, 1.0, %s' % (v(tmp[n_]), v(tmp[n_])))
                    for n_, e in enumerate(es): a('v_rcp_f32 %s, %s' % (v(tmp[n_]), v(tmp[n_])))
                    for n_, e in enumerate(es): a('v_mul_f32 %s, %s, %s' % (v(ac + e), v(ac + e), v(tmp[n_])))
                to = T + 12 if cnt % 2 == 0 else B + 12
                to = T + 12
                cnt += 1
                for q in range(4):
                    a('v_cvt_pk_bf16_f32 %s, %s, %s' % (v(ac + q), v(ac + 2*q), v(ac + 2*q + 1)))
                a('s_mov_b32 s60, %d' % ((4*i + 2*rr)*2048 + j*512))
                a('buffer_store_dwordx4 %s, v4, s[36:39], s60 offen' % v(ac, 4))
    def idx_wait(a, d, l):
        a('s_lshr_b32 s88, s21, 3')
        a('s_add_u32 s88, s88, %d' % F4)
        a('v_add_u32 %s, s88, %s' % (v(d), v(l)))
    c.nwait = 32; c.idx_wait = idx_wait; c.sig = F5
    c.loadargs = loadargs; c.decode = decode; c.epi = epi
    return c

def cfg_ffn2():
    c = G(); c.kidx = 5; c.name = 'ffn2_kernel'; c.BM = 160; c.BN = 32; c.NK = 27; c.NSTG = 6; c.wm = 5; c.wn = 1; c.wk = 1; c.NWL = 8
    c.vgpr = 128; c.W_ka = KA_W2; c.W_pitch = 1280; c.W_bytes = 1728*640*2; c.X_ws = WS_G; c.X_nc = 216; c.grid = 256; c.pi = True
    def loadargs(a):
        a('s_load_dwordx2 s[14:15], s[0:1], %d' % KA_B2)
        a('s_load_dwordx2 s[16:17], s[0:1], %d' % KA_OUT)
    def decode(a):
        a('s_and_b32 s21, s2, 7'); a('s_lshl_b32 s21, s21, 3')
        a('s_lshr_b32 s20, s2, 3')
        a('s_lshr_b32 s22, s20, 2')
        a('s_add_u32 s21, s21, s22'); a('s_lshl_b32 s21, s21, 5')
        a('s_and_b32 s20, s20, 3'); a('s_mul_i32 s20, s20, 160')
        a('s_mov_b32 s22, 0')
    def epi(a, x):
        srd(a, 36, 16, 17, 2048*640*2)
        srd(a, 40, 14, 15, 640*2)
        srd(a, 44, 12, 13, 2048*640*2, WS_H)
        a('s_lshl_b32 s57, s26, 5')
        a('s_add_u32 s57, s57, s20')
        a('v_lshrrev_b32 v4, 5, v1')
        a('v_lshlrev_b32 v5, 4, v4')
        a('s_lshl_b32 s58, s57, 1')
        B = x.FR
        rrs = sorted(set((qq % 4)//2 for qq in x.quads))
        for rr in rrs:
            a('buffer_load_dwordx4 %s, v5, s[40:43], s58 offen offset:%d' % (v(B + rr*4, 4), 32*rr))
        a('s_lshr_b32 s59, s21, 7'); a('s_mul_i32 s59, s59, 80')
        a('s_lshr_b32 s60, s57, 3'); a('s_add_u32 s59, s59, s60'); a('s_lshl_b32 s59, s59, 11')
        a('s_and_b32 s60, s21, 127'); a('s_lshl_b32 s60, s60, 4'); a('s_add_u32 s59, s59, s60')
        a('v_lshlrev_b32 v6, 11, v4')
        a('v_and_b32 v7, 31, v1'); a('v_lshlrev_b32 v5, 4, v7')
        a('v_add_u32 v6, v6, v5')
        for rr in rrs:
            a('s_add_u32 s60, s59, %d' % (rr*4096))
            a('buffer_load_dwordx4 %s, v6, s[44:47], s60 offen' % v(B + 8 + rr*4, 4))
        a('v_add_u32 v7, s21, v7')
        a('v_mul_u32_u24 v7, 1280, v7')
        a('v_lshlrev_b32 v4, 4, v4')
        a('v_add_u32 v7, v7, v4')
        a('s_waitcnt vmcnt(0)')
        T = 96
        for rr in rrs:
            ac = x.ACC + 8*rr
            for e in range(4):
                a('v_lshlrev_b32 %s, 16, %s' % (v(T), v(B + rr*4 + e)))
                a('v_and_b32 %s, 0xffff0000, %s' % (v(T + 1), v(B + rr*4 + e)))
                a('v_add_f32 %s, %s, %s' % (v(ac + 2*e), v(ac + 2*e), v(T)))
                a('v_add_f32 %s, %s, %s' % (v(ac + 2*e + 1), v(ac + 2*e + 1), v(T + 1)))
            for q in range(4):
                a('v_cvt_pk_bf16_f32 %s, %s, %s' % (v(T + 4 + q), v(ac + 2*q), v(ac + 2*q + 1)))
            for e in range(4):
                a('v_lshlrev_b32 %s, 16, %s' % (v(T), v(T + 4 + e)))
                a('v_and_b32 %s, 0xffff0000, %s' % (v(T + 1), v(T + 4 + e)))
                a('v_lshlrev_b32 %s, 16, %s' % (v(T + 2), v(B + 8 + rr*4 + e)))
                a('v_and_b32 %s, 0xffff0000, %s' % (v(T + 3), v(B + 8 + rr*4 + e)))
                a('v_add_f32 %s, %s, %s' % (v(T), v(T), v(T + 2)))
                a('v_add_f32 %s, %s, %s' % (v(T + 1), v(T + 1), v(T + 3)))
                a('v_cvt_pk_bf16_f32 %s, %s, %s' % (v(T + 8 + 4*rr + e), v(T), v(T + 1)))
            a('buffer_store_dwordx4 %s, v7, s[36:39], s58 offen offset:%d' % (v(T + 8 + 4*rr, 4), 32*rr))
    def idx_wait(a, d, l):
        a('s_lshr_b32 s88, s21, 8')
        a('s_add_u32 s88, s88, %d' % F5)
        a('v_lshlrev_b32 %s, 3, %s' % (v(d), v(l)))
        a('v_add_u32 %s, s88, %s' % (v(d), v(d)))
    c.nwait = 27; c.idx_wait = idx_wait; c.sig = None
    c.loadargs = loadargs; c.decode = decode; c.epi = epi
    return c

def gen_ln2(a):
    name = 'ln2_kernel'
    if not FZ.on:
        kernel_header(a, name)
        a('s_cmp_ge_u32 s2, 256')
        a('s_cbranch_scc1 L_ln_end')
    a('s_load_dwordx2 s[6:7], s[0:1], %d' % KA_X)
    a('s_load_dwordx2 s[12:13], s[0:1], %d' % KA_WS)
    a('v_lshrrev_b32 v2, 6, v0')
    a('v_and_b32 v1, 63, v0')
    a('v_readfirstlane_b32 s25, v2')
    a('s_waitcnt lgkmcnt(0)')
    srd(a, 28, 12, 13, 4*2048*640*4, WS_PART)
    srd(a, 32, 6, 7, 2048*640*2)
    srd(a, 36, 12, 13, 2048*640*2, WS_H)
    srd(a, 40, 12, 13, 2048*640*2, WS_HN)
    def idx_wait(a, d, l):
        a('s_lshr_b32 s88, s2, 4')
        a('s_and_b32 s89, s88, 7'); a('s_lshl_b32 s89, s89, 5')
        a('s_lshr_b32 s88, s88, 3'); a('s_lshl_b32 s88, s88, 2')
        a('s_add_u32 s88, s88, s89'); a('s_add_u32 s88, s88, %d' % F3)
        a('v_lshrrev_b32 %s, 2, %s' % (v(d), v(l)))
        a('v_lshlrev_b32 %s, 3, %s' % (v(d), v(d)))
        a('v_and_b32 %s, 3, %s' % (v(d + 2), v(l)))
        a('v_add_u32 %s, %s, %s' % (v(d), v(d), v(d + 2)))
        a('v_add_u32 %s, s88, %s' % (v(d), v(d)))
    fz_wait(a, 16, idx_wait, tmp=120)
    if FZ.on:
        a('s_cmp_lt_u32 s25, 4')
        a('s_cbranch_scc0 L_ln_idle')
    a('s_lshr_b32 s20, s2, 4')
    a('s_and_b32 s21, s2, 15'); a('s_lshl_b32 s21, s21, 3')
    a('v_and_b32 v3, 7, v1'); a('v_lshrrev_b32 v4, 3, v1')
    a('s_mul_i32 s22, s25, 40')
    a('v_add_u32 v4, s22, v4')
    a('v_add_u32 v5, s21, v3')
    a('v_lshlrev_b32 v6, 11, v4'); a('v_lshlrev_b32 v7, 4, v5'); a('v_add_u32 v6, v6, v7')
    a('s_mul_i32 s23, s20, %d' % (160*2048))
    D = 16
    for sk in range(4):
        for u in range(5):
            a('s_add_u32 s54, s23, %d' % (sk*16*160*2048 + u*8*2048))
            a('buffer_load_dwordx4 %s, v6, s[28:31], s54 offen' % v(D + (sk*5 + u)*4, 4))
    a('s_lshl_b32 s24, s2, 3')
    a('v_add_u32 v8, s24, v3'); a('v_mul_u32_u24 v8, 1280, v8'); a('v_lshlrev_b32 v9, 3, v4'); a('v_add_u32 v8, v8, v9')
    XR = 96
    for u in range(5):
        a('buffer_load_dwordx2 %s, v8, s[32:35], 0 offen offset:%d' % (v(XR + 2*u, 2), u*64))
    a('s_waitcnt vmcnt(0)')
    for u in range(5):
        for e in range(4):
            r = D + u*4 + e
            a('v_add_f32 %s, %s, %s' % (v(r), v(r), v(r + 20)))
            a('v_add_f32 %s, %s, %s' % (v(r + 40), v(r + 40), v(r + 60)))
            a('v_add_f32 %s, %s, %s' % (v(r), v(r), v(r + 40)))
    H = 40
    for u in range(5):
        for p in range(2):
            r = D + u*4 + 2*p
            a('v_cvt_pk_bf16_f32 v110, %s, %s' % (v(r), v(r + 1)))
            a('v_lshlrev_b32 v111, 16, v110'); a('v_and_b32 v112, 0xffff0000, v110')
            a('v_lshlrev_b32 v113, 16, %s' % v(XR + 2*u + p)); a('v_and_b32 v114, 0xffff0000, %s' % v(XR + 2*u + p))
            a('v_add_f32 v111, v111, v113'); a('v_add_f32 v112, v112, v114')
            a('v_cvt_pk_bf16_f32 %s, v111, v112' % v(H + 2*u + p))
            a('v_lshlrev_b32 %s, 16, %s' % (v(r), v(H + 2*u + p)))
            a('v_and_b32 %s, 0xffff0000, %s' % (v(r + 1), v(H + 2*u + p)))
    a('v_lshrrev_b32 v9, 1, v4'); a('v_lshlrev_b32 v9, 11, v9'); a('v_and_b32 v10, 1, v4'); a('v_lshlrev_b32 v10, 3, v10')
    a('v_add_u32 v9, v9, v10'); a('v_add_u32 v9, v9, v7')
    a('s_mul_i32 s26, s20, %d' % (80*2048))
    for u in range(5):
        a('s_add_u32 s54, s26, %d' % (u*4*2048))
        a('buffer_store_dwordx2 %s, v9, s[36:39], s54 offen' % v(H + 2*u, 2))
    def red8(r, tmp):
        a('v_add_f32_dpp %s, %s, %s row_ror:8 row_mask:0xf bank_mask:0xf' % (v(r), v(r), v(r)))
        a('v_mov_b32 %s, %s' % (v(tmp), v(r))); a('v_permlane16_swap_b32 %s, %s' % (v(r), v(tmp))); a('v_add_f32 %s, %s, %s' % (v(r), v(r), v(tmp)))
        a('v_mov_b32 %s, %s' % (v(tmp), v(r))); a('v_permlane32_swap_b32 %s, %s' % (v(r), v(tmp))); a('v_add_f32 %s, %s, %s' % (v(r), v(r), v(tmp)))
    def xwave(r, off):
        a('s_lshl_b32 s27, s25, 5')
        a('v_lshlrev_b32 v11, 2, v3'); a('v_add_u32 v12, s27, v11')
        a('ds_write_b32 v12, %s offset:%d' % (v(r), off))
        a('s_waitcnt lgkmcnt(0)'); a('s_barrier')
        for k in range(4):
            a('ds_read_b32 %s, v11 offset:%d' % (v(116 + k), off + 32*k))
        a('s_waitcnt lgkmcnt(0)')
        a('v_add_f32 v116, v116, v117'); a('v_add_f32 v118, v118, v119'); a('v_add_f32 %s, v116, v118' % v(r))
    a('v_add_f32 v110, %s, %s' % (v(D), v(D + 1)))
    for e in range(2, 20): a('v_add_f32 v110, v110, %s' % v(D + e))
    red8(110, 111); xwave(110, 0)
    a('v_mul_f32 v110, 0x%08x, v110' % f32bits(1.0/640))
    for e in range(20): a('v_sub_f32 %s, %s, v110' % (v(D + e), v(D + e)))
    a('v_mul_f32 v110, %s, %s' % (v(D), v(D)))
    for e in range(1, 20): a('v_fmac_f32 v110, %s, %s' % (v(D + e), v(D + e)))
    red8(110, 111); xwave(110, 256)
    a('v_mov_b32 v111, 0x%08x' % f32bits(1e-5))
    a('v_fmac_f32 v111, 0x%08x, v110' % f32bits(1.0/640))
    a('v_rsq_f32 v111, v111')
    for e in range(20): a('v_mul_f32 %s, %s, v111' % (v(D + e), v(D + e)))
    for u in range(5):
        for p in range(2):
            a('v_cvt_pk_bf16_f32 %s, %s, %s' % (v(60 + 2*u + p), v(D + u*4 + 2*p), v(D + u*4 + 2*p + 1)))
        a('s_add_u32 s54, s26, %d' % (u*4*2048))
        a('buffer_store_dwordx2 %s, v9, s[40:43], s54 offen' % v(60 + 2*u, 2))
    if FZ.on:
        a('s_branch L_ln_sig')
        a.label('L_ln_idle')
        a('s_barrier'); a('s_barrier')
        a.label('L_ln_sig')
        fz_signal(a, F4)
    a.label('L_ln_end')
    if not FZ.on: a('s_endpgm')
    return name, 128, (256, 256, 1024)
```

```python
from asmlib import *
from common import *
import os
FOLD = bool(os.environ.get('FOLD'))

def gen_kv(a):
    name = 'kv_kernel'
    if not FZ.on:
        kernel_header(a, name)
        a('s_cmp_ge_u32 s2, 256')
        a('s_cbranch_scc1 L_kv_end')
    a('s_load_dwordx2 s[4:5], s[0:1], %d' % KA_CKV)
    a('s_load_dwordx4 s[8:11], s[0:1], %d' % KA_WUK)
    a('s_load_dwordx2 s[6:7], s[0:1], %d' % KA_X)
    a('s_load_dwordx2 s[12:13], s[0:1], %d' % KA_WS)
    a('s_load_dwordx2 s[62:63], s[0:1], %d' % KA_W1)
    stamp(a, 0)
    rtstamp(a, 8)
    a('s_and_b32 s20, s2, 7')
    a('s_lshr_b32 s21, s2, 3')
    a('s_and_b32 s22, s21, 7')
    a('s_lshr_b32 s21, s21, 3')
    a('s_lshl_b32 s20, s20, 2')
    a('s_add_u32 s20, s20, s21')
    a('s_lshr_b32 s23, s20, 4')
    a('s_and_b32 s24, s20, 15')
    a('v_lshrrev_b32 v1, 6, v0')
    a('v_and_b32 v2, 63, v0')
    a('v_readfirstlane_b32 s25, v1')
    a('s_waitcnt lgkmcnt(0)')
    a('s_cmp_eq_u32 s23, 0')
    a('s_cselect_b32 s26, s8, s10')
    a('s_cselect_b32 s27, s9, s11')
    srd(a, 28, 26, 27, 512*4096*2)
    srd(a, 32, 4, 5, 2048*512*2)
    srd(a, 36, 12, 13, 32*1024*1024, WS_KV)
    srd(a, 40, 6, 7, 2048*640*2)
    srd(a, 44, 12, 13, 2048*640*2, WS_XN)
    a('s_lshl_b32 s48, s2, 3')
    a('s_add_u32 s48, s48, s25')
    a('s_mul_i32 s49, s48, 1280')
    a('v_lshlrev_b32 v3, 4, v2')
    a('v_mov_b32 v20, 0'); a('v_mov_b32 v21, 0'); a('v_mov_b32 v22, 0'); a('v_mov_b32 v23, 0')
    a('buffer_load_dwordx4 v[16:19], v3, s[40:43], s49 offen')
    a('v_add_u32 v4, 1024, v3')
    a('v_cmp_gt_u32 vcc, 16, v2')
    a('v_mov_b32 v5, 0x7fffffff')
    a('v_cndmask_b32 v4, v5, v4, vcc')
    a('buffer_load_dwordx4 v[20:23], v4, s[40:43], s49 offen')
    if FOLD:
        a('v_mul_u32_u24 v24, 3456, v0')
        a('s_lshl_b32 s61, s2, 4')
        srd(a, 64, 62, 63, 640*1728*2)
        a('s_cmp_lt_u32 s2, 216')
        a('s_cbranch_scc0 L_kv_nocs0')
        a('buffer_load_dwordx4 v[112:115], v24, s[64:67], s61 offen')
        a('v_add_u32 v25, %d, v24' % (512*3456))
        a('buffer_load_dwordx4 v[116:119], v25, s[64:67], s61 offen')
        a.label('L_kv_nocs0')
    a('s_lshl_b32 s50, s25, 1')
    a('v_lshrrev_b32 v7, 5, v2')
    a('v_add_u32 v7, s50, v7')
    a('v_and_b32 v8, 3, v7')
    a('v_lshlrev_b32 v8, 2, v8')
    a('v_and_b32 v9, 31, v2')
    a('v_xor_b32 v8, v8, v9')
    a('v_lshlrev_b32 v8, 4, v8')
    a('v_lshlrev_b32 v7, 13, v7')
    a('v_add_u32 v6, v7, v8')
    a('s_lshl_b32 s50, s25, 3')
    a('v_lshrrev_b32 v7, 3, v2')
    a('v_add_u32 v7, s50, v7')
    a('v_lshrrev_b32 v8, 1, v7')
    a('v_and_b32 v8, 7, v8')
    a('v_and_b32 v9, 7, v2')
    a('v_xor_b32 v8, v8, v9')
    a('v_lshlrev_b32 v8, 4, v8')
    a('v_lshlrev_b32 v7, 10, v7')
    a('v_add_u32 v10, v7, v8')
    a('s_lshl_b32 s51, s24, 9')
    a('s_lshl_b32 s52, s22, 18')
    a('s_lshl_b32 s53, s25, 10')
    def dma(st):
        buf = (st & 1) * 65536
        L = []
        for j in range(4):
            L.append('s_add_u32 m0, s53, %d' % (buf + j*8192))
            L.append('s_add_u32 s54, s51, %d' % (st*64*8192 + j*16*8192))
            L.append('buffer_load_dwordx4 v6, s[28:31], s54 offen lds')
        for j in range(4):
            L.append('s_add_u32 m0, s53, %d' % (buf + 32768 + j*8192))
            L.append('s_add_u32 s54, s52, %d' % (j*64*1024 + st*128))
            L.append('buffer_load_dwordx4 v10, s[32:35], s54 offen lds')
        return L
    for x in dma(0): a(x)
    for x in dma(1): a(x)
    if not os.environ.get('NOPF') and not STAMPS:
        prefetch_arrays(a, [(KA_WQ, 640*4096*2)], 'kv', 60, 61, 2)
    a('v_and_b32 v7, 3, v2')
    a('v_and_b32 v8, 1, v7')
    a('v_lshlrev_b32 v8, 1, v8')
    a('v_lshrrev_b32 v9, 1, v7')
    a('v_or_b32 v8, v8, v9')
    a('s_cmp_eq_u32 s23, 0')
    a('s_cselect_b64 s[56:57], -1, 0')
    a('v_cndmask_b32 v7, v7, v8, s[56:57]')
    a('v_lshrrev_b32 v8, 1, v7')
    a('v_and_b32 v7, 1, v7')
    a('v_lshlrev_b32 v7, 3, v7')
    a('v_lshrrev_b32 v9, 4, v2')
    a('v_and_b32 v9, 1, v9')
    a('v_lshlrev_b32 v9, 1, v9')
    a('v_add_u32 v8, v8, v9')
    a('s_and_b32 s55, s25, 3')
    a('s_lshl_b32 s55, s55, 3')
    a('v_add_u32 v8, s55, v8')
    a('v_lshrrev_b32 v9, 2, v2')
    a('v_and_b32 v9, 3, v9')
    a('v_lshlrev_b32 v11, 2, v9')
    a('v_lshrrev_b32 v12, 5, v2')
    a('v_lshlrev_b32 v12, 3, v12')
    a('v_add_u32 v12, v12, v9')
    a('v_lshlrev_b32 v12, 9, v12')
    a('v_add_u32 v12, v12, v7')
    WA = 24
    for i in range(2):
        a('v_add_u32 v13, %d, v8' % (4*i))
        a('v_xor_b32 v13, v13, v11')
        a('v_lshlrev_b32 v13, 4, v13')
        a('v_add_u32 %s, v12, v13' % v(WA + i))
        a('v_add_u32 %s, 0x10000, %s' % (v(WA + 2 + i), v(WA + i)))
    a('v_and_b32 v7, 31, v2')
    a('v_and_b32 v8, 0x13, v7')
    a('v_and_b32 v9, 4, v7')
    a('v_lshlrev_b32 v9, 1, v9')
    a('v_or_b32 v8, v8, v9')
    a('v_and_b32 v9, 8, v7')
    a('v_lshrrev_b32 v9, 1, v9')
    a('v_or_b32 v8, v8, v9')
    a('v_cndmask_b32 v7, v8, v7, s[56:57]')
    a('v_lshrrev_b32 v8, 1, v7')
    a('v_and_b32 v8, 7, v8')
    a('v_lshrrev_b32 v9, 5, v2')
    a('s_lshr_b32 s55, s25, 2')
    a('s_lshl_b32 s55, s55, 14')
    a('s_add_u32 s55, s55, 32768')
    a('v_lshlrev_b32 v7, 7, v7')
    a('v_add_u32 v7, s55, v7')
    XA = 28
    for kk in range(4):
        a('v_add_u32 v13, %d, v9' % (2*kk))
        a('v_xor_b32 v13, v13, v8')
        a('v_lshlrev_b32 v13, 4, v13')
        a('v_add_u32 %s, v7, v13' % v(XA + kk))
        a('v_add_u32 %s, 0x10000, %s' % (v(XA + 4 + kk), v(XA + kk)))
    ACC = 128
    FR = 64
    for r in range(128):
        a('v_mov_b32 %s, 0' % v(ACC + r))
    def reads(st, kk, fs):
        b = st & 1
        L = []
        base = FR + 24*fs
        for i in range(2):
            for T in range(2):
                L.append('ds_read_b64_tr_b16 %s, %s offset:%d' % (v(base + 4*i + 2*T, 2), v(WA + 2*b + i), kk*8192 + T*2048))
        for j in range(4):
            L.append('ds_read_b128 %s, %s offset:%d' % (v(base + 8 + 4*j, 4), v(XA + 4*b + kk), j*4096))
        return [L[0], L[1], L[4], L[2], L[3], L[5], L[6], L[7]]
    def mfmas(fs, mat):
        base = FR + 24*fs
        L = []
        for j in range(4):
            for i in range(2):
                acc = v(ACC + (i*4 + j)*16, 16)
                wf = v(base + 4*i, 4); xf = v(base + 8 + 4*j, 4)
                if mat == 0:
                    L.append('v_mfma_f32_32x32x16_bf16 %s, %s, %s, %s' % (acc, wf, xf, acc))
                else:
                    L.append('v_mfma_f32_32x32x16_bf16 %s, %s, %s, %s' % (acc, xf, wf, acc))
        return L
    a('s_cmp_eq_u32 s23, 0')
    a('s_cbranch_scc0 L_kv_vpath')
    NST = 8
    for mat in range(2):
        if mat == 1:
            a.label('L_kv_vpath')
        stamp(a, 1)
        a('s_waitcnt vmcnt(8)')
        a('s_barrier')
        stamp(a, 2)
        for x in reads(0, 0, 0): a(x)
        for st in range(NST):
            for kk in range(4):
                fs = kk & 1
                if kk < 3:
                    a('s_waitcnt lgkmcnt(0)')
                    for x in interleave(mfmas(fs, mat), reads(st, kk + 1, fs ^ 1), per=2): a(x)
                else:
                    if st + 1 < NST:
                        a('s_waitcnt vmcnt(0) lgkmcnt(0)')
                        a('s_barrier')
                        fill = []
                        if st + 2 < NST: fill += dma(st + 2)
                        rd = reads(st + 1, 0, fs ^ 1)
                        for x in interleave(mfmas(fs, mat), rd + fill, per=4): a(x)
                    else:
                        a('s_waitcnt lgkmcnt(0)')
                        for x in mfmas(fs, mat): a(x)
        stamp(a, 3)
        a('s_lshr_b32 s55, s25, 1')
        a('s_and_b32 s55, s55, 1')
        a('s_lshl_b32 s58, s24, 1')
        a('s_add_u32 s58, s58, s55')
        a('s_lshl_b32 s58, s58, 5')
        a('s_lshl_b32 s59, s22, 2')
        a('s_add_u32 s58, s58, s59')
        a('s_lshr_b32 s59, s25, 2')
        a('s_lshl_b32 s59, s59, 1')
        a('s_add_u32 s58, s58, s59')
        a('s_lshl_b32 s58, s58, 15')
        a('s_and_b32 s59, s25, 1')
        a('v_and_b32 v7, 31, v2')
        a('v_lshrrev_b32 v8, 5, v2')
        a('v_lshlrev_b32 v7, 4, v7')
        if mat == 0:
            a('s_lshl_b32 s59, s59, 13')
            a('v_lshlrev_b32 v8, 10, v8')
        else:
            a('s_lshl_b32 s59, s59, 10')
            a('s_add_u32 s59, s59, 16384')
            a('v_lshlrev_b32 v8, 11, v8')
        a('v_add_u32 v7, v7, v8')
        a('s_add_u32 s58, s58, s59')
        a('v_add_u32 v7, s58, v7')
        t = 36
        cnt = 0
        for j in range(4):
            for i in range(2):
                accb = ACC + (i*4 + j)*16
                for rr in range(2):
                    tb_ = t + (cnt % 4) * 4; cnt += 1
                    for q in range(4):
                        a('v_cvt_pk_bf16_f32 %s, %s, %s' % (v(tb_ + q), v(accb + 8*rr + 2*q), v(accb + 8*rr + 2*q + 1)))
                    if mat == 0:
                        off = (j >> 1)*32768 + (4*i + 2*rr)*1024 + (j & 1)*512
                    else:
                        off = (j >> 1)*32768 + (4*(j & 1) + 2*rr)*2048 + i*512
                    a('s_add_u32 s60, 0, %d' % off if False else 's_mov_b32 s60, %d' % off)
                    a('buffer_store_dwordx4 %s, v7, s[36:39], s60 offen' % v(tb_, 4))
        if mat == 0:
            a('s_branch L_kv_ln')
    a.label('L_kv_ln')
    if FOLD:
        a('s_cmp_lt_u32 s2, 216')
        a('s_cbranch_scc0 L_kv_nocs')
        srd(a, 68, 12, 13, 1728*4, WS_CS)
        for e in range(4):
            a('v_lshlrev_b32 %s, 16, %s' % (v(36 + 2*e), v(112 + e)))
            a('v_and_b32 %s, 0xffff0000, %s' % (v(37 + 2*e), v(112 + e)))
            a('v_lshlrev_b32 v44, 16, %s' % v(116 + e))
            a('v_and_b32 v45, 0xffff0000, %s' % v(116 + e))
            a('v_add_f32 %s, %s, v44' % (v(36 + 2*e), v(36 + 2*e)))
            a('v_add_f32 %s, %s, v45' % (v(37 + 2*e), v(37 + 2*e)))
        for e in range(8):
            wave_sum(a, 36 + e, 44)
        a('s_barrier')
        a('s_lshl_b32 s61, s25, 5')
        a('v_mov_b32 v24, s61')
        a('ds_write_b128 v24, v[36:39]')
        a('ds_write_b128 v24, v[40:43] offset:16')
        a('s_waitcnt lgkmcnt(0)')
        a('s_barrier')
        a('v_lshlrev_b32 v24, 2, v2')
        for w in range(8):
            a('ds_read_b32 %s, v24 offset:%d' % (v(36 + w), 32*w))
        a('s_waitcnt lgkmcnt(0)')
        for w in range(1, 8):
            a('v_add_f32 v36, v36, %s' % v(36 + w))
        a('s_lshl_b32 s61, s2, 5')
        a('v_cmp_gt_u32 vcc, 8, v0')
        a('v_mov_b32 v25, 0x7fffffff')
        a('v_cndmask_b32 v24, v25, v24, vcc')
        a('buffer_store_dword v36, v24, s[68:71], s61 offen')
        a.label('L_kv_nocs')
    a('v_cmp_gt_u32 vcc, 16, v2')
    a('v_mov_b32 v55, 0')
    a('v_cndmask_b32 v55, v55, 1.0, vcc')
    layernorm_row(a, 16, True, 36, None)
    a('s_lshr_b32 s55, s48, 7')
    a('s_mul_i32 s55, s55, %d' % (80*128*16))
    a('s_and_b32 s58, s48, 127')
    a('s_lshl_b32 s58, s58, 4')
    a('s_add_u32 s55, s55, s58')
    a('v_lshlrev_b32 v7, 11, v2')
    a('buffer_store_dwordx4 v[16:19], v7, s[44:47], s55 offen')
    a('v_add_u32 v8, 0x20000, v7')
    a('v_mov_b32 v5, 0x7fffffff')
    a('v_cndmask_b32 v8, v5, v8, vcc')
    a('buffer_store_dwordx4 v[20:23], v8, s[44:47], s55 offen')
    stamp(a, 4)
    if STAMPS:
        a('s_waitcnt vmcnt(0)')
        stamp(a, 5)
        rtstamp(a, 9); stamp_flush(a, 0, 6)
    fz_signal(a, F1)
    a.label('L_kv_end')
    if not FZ.on: a('s_endpgm')
    return name, 256, (256, 512, 131072)
```

```python
import sys, os
sys.path.insert(0, os.path.dirname(os.path.abspath(__file__)))
from asmlib import *
from common import *
from kv import gen_kv
from attn import gen_attn
from gemm import *

def main():
    a = Asm()
    kernels = []
    FZ.on = bool(os.environ.get('FUSE'))
    if FZ.on:
        fname = NAME + '_kernel'
        kernel_header(a, fname)
        a('s_cmp_ge_u32 s2, 256')
        a('s_cbranch_scc1 L_fz_end')
        fz_prologue(a)
    kernels.append(gen_kv(a))
    kernels.append(gen_attn(a))
    if FOLD:
        kernels.append(gen_gemm(a, cfg_oprojF()))
    else:
        kernels.append(gen_gemm(a, cfg_oproj()))
        kernels.append(gen_ln2(a))
    kernels.append(gen_gemm(a, cfg_ffn1()))
    kernels.append(gen_gemm(a, cfg_ffn2()))
    if FZ.on:
        a.label('L_fz_end')
        a('s_endpgm')
        kernels = [(fname, 256, (256, 512, 163840))]
        for i in a.ins:
            if i.kind == 'vmem' and i.op.startswith('buffer_load') and 'sc1' not in i.text:
                if i.text.rstrip().endswith(' lds'):
                    i.text = i.text.rstrip()[:-4] + ' sc1 lds'
                else:
                    i.text = i.text + ' sc1'
    if not os.environ.get('NOSC1'):
        for i in a.ins:
            if i.kind == 'vmem' and i.op.startswith('buffer_store') and 'sc1' not in i.text:
                i.text = i.text + ' sc1'
    a.fix_hazards()
    hdr = open(os.path.join(os.path.dirname(os.path.abspath(__file__)), 'header.txt')).read()
    out = hdr
    for (n, vg, (g, b, lds)) in kernels:
        out += '; @launch kernel=%s grid=(%d,1,1) block=(%d,1,1) lds=%d\n' % (n, g, b, lds)
    out += '.amdgcn_target "amdgcn-amd-amdhsa--gfx950"\n.text\n'
    out += a.text()
    out += '.section .rodata,"a"\n'
    for (n, vg, _) in kernels:
        out += kernel_desc(n, vg)
    path = sys.argv[1] if len(sys.argv) > 1 else 'cdna_kernels/%s.s' % NAME
    open(path, 'w').write(out)
    print('wrote', path, len(out), 'bytes')

if __name__ == '__main__':
    main()
```

```python
from asmlib import *
from common import *
from kv import kv_pending_stores
import os

LOG2E = 1.4426950408889634
CSC = (128 ** -0.5) * LOG2E

def stream(a, reads, mfmas, fillers, depth, per_fill=None, pre_outstanding=0):
    issued = 0
    n = len(mfmas)
    for _ in range(min(depth, len(reads))):
        a(reads[issued]); issued += 1
    fi = 0
    waited = -1
    for i, (t, need) in enumerate(mfmas):
        while issued <= need:
            a(reads[issued]); issued += 1
        if need > waited:
            a('s_waitcnt lgkmcnt(%d)' % min(15, issued - need - 1))
            waited = need
        a(t)
        if issued < len(reads):
            a(reads[issued]); issued += 1
        tgt = (len(fillers) * (i + 1) + n - 1) // n
        while fi < tgt:
            a(fillers[fi]); fi += 1
    while fi < len(fillers):
        a(fillers[fi]); fi += 1

class Stream:
    def __init__(self, a, reads, depth, pre=0):
        self.a = a; self.reads = reads; self.issued = pre; self.waited = -1
        while self.issued < min(depth, len(reads)):
            a(reads[self.issued]); self.issued += 1
    def seg(self, mfmas, fillers):
        a = self.a; n = len(mfmas); fi = 0
        for i, (t, need) in enumerate(mfmas):
            while self.issued <= need:
                a(self.reads[self.issued]); self.issued += 1
            if need > self.waited:
                a('s_waitcnt lgkmcnt(%d)' % min(15, self.issued - need - 1))
                self.waited = need
            a(t)
            if self.issued < len(self.reads):
                a(self.reads[self.issued]); self.issued += 1
            tgt = (len(fillers) * (i + 1) + n - 1) // n
            while fi < tgt:
                a(fillers[fi]); fi += 1
        while fi < len(fillers):
            a(fillers[fi]); fi += 1

def gen_attn(a):
    name = 'attn_kernel'
    if not FZ.on:
        kernel_header(a, name)
        a('s_cmp_ge_u32 s2, 256')
        a('s_cbranch_scc1 L_at_end')
    a('s_load_dwordx2 s[4:5], s[0:1], %d' % KA_WQ)
    a('s_load_dwordx2 s[12:13], s[0:1], %d' % KA_WS)
    stamp(a, 0)
    rtstamp(a, 8)
    if os.environ.get('RT'):
        a('s_memrealtime s[82:83]'); a('s_waitcnt lgkmcnt(0)')
    a('s_and_b32 s20, s2, 7')
    a('s_lshl_b32 s20, s20, 2')
    a('s_lshr_b32 s21, s2, 3')
    a('s_and_b32 s21, s21, 3')
    a('s_add_u32 s20, s20, s21')
    a('s_lshr_b32 s21, s2, 5')
    a('s_sub_u32 s22, 15, s21')
    a('v_lshrrev_b32 v2, 6, v0')
    a('v_and_b32 v1, 63, v0')
    a('v_readfirstlane_b32 s25, v2')
    a('s_waitcnt lgkmcnt(0)')
    srd(a, 28, 4, 5, 640*4096*2)
    srd(a, 32, 12, 13, 2048*640*2, WS_XN)
    srd(a, 36, 12, 13, 32 << 20, WS_KV)
    srd(a, 40, 12, 13, 16 << 20, WS_CTX)
    a('s_lshl_b32 s50, s25, 2')
    a('v_lshrrev_b32 v7, 4, v1')
    a('v_lshlrev_b32 v8, 2, v7')
    a('v_and_b32 v9, 15, v1')
    a('v_xor_b32 v8, v8, v9')
    a('v_lshlrev_b32 v8, 4, v8')
    a('v_add_u32 v7, s50, v7')
    a('v_lshlrev_b32 v7, 13, v7')
    a('v_add_u32 v6, v7, v8')
    a('s_lshl_b32 s53, s25, 10')
    a('v_lshlrev_b32 v4, 4, v1')
    a('v_add_u32 v4, s53, v4')
    a('s_lshl_b32 s51, s20, 8')
    a('s_mul_i32 s52, s21, %d' % (80*2048))
    a('s_mul_i32 s55, s22, %d' % (80*2048))
    QST = 49152
    def qdma(st):
        buf = (st % 3) * QST
        L = []
        for j in range(2):
            L.append('s_add_u32 m0, s53, %d' % (buf + j*8192))
            L.append('s_add_u32 s54, s51, %d' % (st*64*8192 + j*32*8192))
            L.append('buffer_load_dwordx4 v6, s[28:31], s54 offen lds')
        for sel, sb in ((0, 's52'), (1, 's55')):
            for j in range(2):
                L.append('s_add_u32 m0, s53, %d' % (buf + 16384 + sel*16384 + j*8192))
                L.append('s_add_u32 s54, %s, %d' % (sb, st*16384 + j*8192))
                L.append('buffer_load_dwordx4 v4, s[32:35], s54 offen lds')
        return L
    def idx_xn(a, d, l):
        a('v_and_b32 %s, 15, %s' % (v(d), v(l)))
        a('s_lshl_b32 s88, s21, 4'); a('s_lshl_b32 s89, s22, 4')
        a('v_mov_b32 %s, s88' % v(d + 2)); a('v_mov_b32 %s, s89' % v(d + 3))
        a('v_cmp_gt_u32 vcc, 16, %s' % v(l))
        a('v_cndmask_b32 %s, %s, %s, vcc' % (v(d + 2), v(d + 3), v(d + 2)))
        a('v_add_u32 %s, %s, %s' % (v(d), v(d), v(d + 2)))
        a('v_add_u32 %s, %d, %s' % (v(d), F1X, v(d)))
    if FZ.on:
        for x in qdma(0)[:6]: a(x)
        for x in qdma(1)[:6]: a(x)
        fz_wait(a, 32, idx_xn, tmp=8)
        fz_stamp(a, 3)
        for x in qdma(0)[6:]: a(x)
        for x in qdma(1)[6:]: a(x)
    else:
        for x in qdma(0): a(x)
        for x in qdma(1): a(x)
    if not os.environ.get('NOPF') and not STAMPS:
        prefetch_arrays(a, [(KA_WO, 4096*640*2), (KA_W1, 640*1728*2), (KA_W2, 1728*640*2)], 'at', 45, 46, 1)
    a('v_and_b32 v7, 3, v1')
    a('v_and_b32 v8, 1, v7')
    a('v_lshlrev_b32 v8, 1, v8')
    a('v_lshrrev_b32 v9, 1, v7')
    a('v_or_b32 v7, v8, v9')
    a('v_lshrrev_b32 v8, 1, v7')
    a('v_and_b32 v7, 1, v7')
    a('v_lshlrev_b32 v7, 3, v7')
    a('v_lshrrev_b32 v9, 4, v1')
    a('v_and_b32 v9, 1, v9')
    a('v_lshlrev_b32 v9, 1, v9')
    a('v_add_u32 v8, v8, v9')
    a('s_and_b32 s56, s25, 1')
    a('s_lshl_b32 s56, s56, 3')
    a('v_add_u32 v8, s56, v8')
    a('v_lshrrev_b32 v9, 2, v1')
    a('v_and_b32 v9, 3, v9')
    a('v_lshlrev_b32 v11, 2, v9')
    a('v_lshrrev_b32 v12, 5, v1')
    a('v_lshlrev_b32 v12, 3, v12')
    a('v_add_u32 v12, v12, v9')
    a('v_lshlrev_b32 v12, 8, v12')
    a('v_add_u32 v12, v12, v7')
    WA = 80
    for i in range(2):
        a('v_add_u32 v13, %d, v8' % (4*i))
        a('v_xor_b32 v13, v13, v11')
        a('v_lshlrev_b32 v13, 4, v13')
        a('v_add_u32 %s, v12, v13' % v(WA + i))
        for stg in (1, 2):
            a('v_add_u32 %s, %d, %s' % (v(WA + 2*stg + i), stg*QST, v(WA + i)))
    XA = 86
    a('s_lshr_b32 s56, s25, 2')
    a('s_lshl_b32 s56, s56, 14')
    a('s_lshr_b32 s57, s25, 1')
    a('s_and_b32 s57, s57, 1')
    a('s_lshl_b32 s57, s57, 10')
    a('s_add_u32 s56, s56, s57')
    a('s_add_u32 s56, s56, 16384')
    a('v_and_b32 v7, 31, v1')
    a('v_lshlrev_b32 v7, 4, v7')
    a('v_lshrrev_b32 v8, 5, v1')
    a('v_lshlrev_b32 v8, 11, v8')
    a('v_add_u32 v7, v7, v8')
    a('v_add_u32 %s, s56, v7' % v(XA))
    for stg in (1, 2):
        a('v_add_u32 %s, %d, %s' % (v(XA + stg), stg*QST, v(XA)))
    ACC = 128; FR = 48
    for r in range(64): a('v_mov_b32 %s, 0' % v(ACC + r))
    def qreads(st, kk, fs):
        b = st % 3; base = FR + 16*fs
        L = []
        for i in range(2):
            for T in range(2):
                L.append('ds_read_b64_tr_b16 %s, %s offset:%d' % (v(base + 4*i + 2*T, 2), v(WA + 2*b + i), kk*4096 + T*1024))
        for j in range(2):
            L.append('ds_read_b128 %s, %s offset:%d' % (v(base + 8 + 4*j, 4), v(XA + b), kk*4096 + j*512))
        return [L[0], L[1], L[4], L[2], L[3], L[5]]
    def qmfmas(fs):
        base = FR + 16*fs
        L = []
        for j in range(2):
            for i in range(2):
                acc = v(ACC + (i*2 + j)*16, 16)
                L.append('v_mfma_f32_32x32x16_bf16 %s, %s, %s, %s' % (acc, v(base + 4*i, 4), v(base + 8 + 4*j, 4), acc))
        return L
    NQ = 10
    a('s_waitcnt vmcnt(%d)' % (4 if FZ.on else 6))
    a('s_barrier')
    if not os.environ.get('RT'): stamp(a, 1)
    for x in qdma(2): a(x)
    for x in qreads(0, 0, 0): a(x)
    for st in range(NQ):
        for kk in range(4):
            fs = kk & 1
            if kk < 3:
                a('s_waitcnt lgkmcnt(0)')
                for x in interleave(qmfmas(fs), qreads(st, kk + 1, fs ^ 1), per=2): a(x)
            elif st + 1 < NQ:
                newer = (6 if st + 2 < NQ else 0) + (2 if (FZ.on and 1 <= st <= 8) else 0)
                a('s_waitcnt vmcnt(%d) lgkmcnt(0)' % newer)
                a('s_barrier')
                fill = qdma(st + 3) if st + 3 < NQ else []
                npend = 0
                if FZ.on:
                    pend = kv_pending_stores()[2*st:2*st + 2] if st < 8 else []
                    fill = [x for g in pend for x in g] + fill
                for x in interleave(qmfmas(fs), qreads(st + 1, 0, fs ^ 1) + fill, per=8): a(x)
            else:
                a('s_waitcnt lgkmcnt(0)')
                for x in qmfmas(fs): a(x)
    a('s_barrier')
    if FZ.on: fz_signal(a, F1)
    if not os.environ.get('RT'): stamp(a, 2)
    a('s_lshr_b32 s56, s25, 2')
    a('s_lshl_b32 s56, s56, 15')
    a('s_add_u32 s56, s56, 98304')
    a('s_lshr_b32 s57, s25, 1')
    a('s_and_b32 s57, s57, 1')
    a('s_lshl_b32 s57, s57, 10')
    a('s_add_u32 s56, s56, s57')
    a('s_and_b32 s57, s25, 1')
    a('s_lshl_b32 s57, s57, 14')
    a('s_add_u32 s56, s56, s57')
    a('v_add_u32 v7, s56, v7')
    a('s_mov_b32 s62, 0x%08x' % f32bits(CSC))
    cnt = 0
    for j in range(2):
        for i in range(2):
            accb = ACC + (i*2 + j)*16
            for rr in range(2):
                tb_ = 48 + (cnt % 4)*4; cnt += 1
                for q in range(8):
                    a('v_mul_f32 %s, s62, %s' % (v(accb + 8*rr + q), v(accb + 8*rr + q)))
                for q in range(4):
                    a('v_cvt_pk_bf16_f32 %s, %s, %s' % (v(tb_ + q), v(accb + 8*rr + 2*q), v(accb + 8*rr + 2*q + 1)))
                a('ds_write_b128 v7, %s offset:%d' % (v(tb_, 4), (4*i + 2*rr)*2048 + j*512))
    a('s_waitcnt lgkmcnt(0)')
    a('s_barrier')
    KAD, VAD, LIN, M, L_, TAU = 2, 3, 4, 5, 6, 8
    Q = 16; S = [48, 80]; P = 112; O = 128; FB = 192; NEGM = 224; T = 240
    NFB = 8
    a('s_lshr_b32 s26, s25, 2')
    a('s_and_b32 s27, s25, 3')
    a('v_and_b32 v9, 31, v1')
    a('v_and_b32 v10, 0x13, v9')
    a('v_and_b32 v11, 4, v9')
    a('v_lshlrev_b32 v11, 1, v11')
    a('v_or_b32 v10, v10, v11')
    a('v_and_b32 v11, 8, v9')
    a('v_lshrrev_b32 v11, 1, v11')
    a('v_or_b32 v10, v10, v11')
    a('v_lshlrev_b32 v10, 4, v10')
    a('v_lshrrev_b32 v11, 5, v1')
    a('s_lshl_b32 s56, s26, 16')
    a('v_lshlrev_b32 v12, 10, v11')
    a('v_add_u32 v12, v12, v10')
    a('v_add_u32 %s, s56, v12' % v(KAD))
    a('v_lshlrev_b32 v12, 11, v11')
    a('v_add_u32 v12, v12, v10')
    a('s_add_u32 s57, s56, 32768')
    a('v_add_u32 %s, s57, v12' % v(VAD))
    a('s_lshl_b32 s58, s27, 10')
    a('v_lshlrev_b32 %s, 4, v1' % v(LIN))
    a('v_add_u32 %s, s58, %s' % (v(LIN), v(LIN)))
    a('s_add_u32 s59, s56, s58')
    a('s_lshl_b32 s60, s27, 5')
    a('s_lshl_b32 s61, s26, 6')
    a('s_sub_u32 s60, s60, s61')
    a('v_lshlrev_b32 v12, 3, v11')
    a('v_sub_u32 v12, v9, v12')
    a('v_add_u32 %s, s60, v12' % v(TAU))
    QAD = 9
    a('v_lshlrev_b32 v12, 11, v11')
    a('v_lshlrev_b32 v13, 4, v9')
    a('v_add_u32 v12, v12, v13')
    a('s_lshl_b32 s61, s27, 9')
    a('v_add_u32 %s, s61, v12' % v(QAD))
    a('s_mov_b32 s63, 0')
    a('s_mov_b32 s64, s21')
    a('s_lshl_b32 s65, s20, 20')
    a('s_lshl_b32 s66, s26, 15')
    a('s_add_u32 s65, s65, s66')
    a('v_mov_b32 %s, 0x41000000' % v(T + 3))
    def idx_kv(a, d, l):
        a('s_lshr_b32 s88, s20, 1')
        a('v_lshrrev_b32 %s, 3, %s' % (v(d + 2), v(l)))
        a('v_lshlrev_b32 %s, 4, %s' % (v(d + 2), v(d + 2)))
        a('v_add_u32 %s, s88, %s' % (v(d + 2), v(d + 2)))
        a('v_and_b32 %s, 3, %s' % (v(d + 3), v(d + 2)))
        a('v_lshlrev_b32 %s, 3, %s' % (v(d + 3), v(d + 3)))
        a('v_and_b32 %s, 7, %s' % (v(d), v(l)))
        a('v_add_u32 %s, %s, %s' % (v(d), v(d), v(d + 3)))
        a('v_lshlrev_b32 %s, 3, %s' % (v(d), v(d)))
        a('v_lshrrev_b32 %s, 2, %s' % (v(d + 2), v(d + 2)))
        a('v_add_u32 %s, %s, %s' % (v(d), v(d), v(d + 2)))
        a('v_add_u32 %s, %d, %s' % (v(d), F1, v(d)))
    fz_stamp(a, 4)
    fz_wait(a, 16, idx_kv, tmp=10)
    fz_stamp(a, 5)
    stamp(a, 3)
    a.label('L_at_tile')
    a('s_mul_i32 s66, s63, 32768')
    a('s_add_u32 s66, s66, 98304')
    a('v_add_u32 v12, s66, %s' % v(QAD))
    for ks in range(8):
        a('ds_read_b128 %s, v12 offset:%d' % (v(Q + 4*ks, 4), ks*4096))
    a('s_waitcnt lgkmcnt(0)')
    a('s_barrier')
    a('s_add_u32 s67, s64, 1')
    a('s_lshl_b32 s73, s64, 16')
    a('s_add_u32 s73, s73, s65')
    def dmaK(jreg_off, slot):
        L = []
        for j in range(4):
            L.append(['s_add_u32 m0, s59, %d' % (slot*16384 + j*4096),
                      's_add_u32 s54, %s, %d' % (jreg_off, j*4096),
                      'buffer_load_dwordx4 %s, s[36:39], s54 offen lds' % v(LIN)])
        return L
    def dmaV(jreg_off, slot):
        L = []
        for j in range(4):
            L.append(['s_add_u32 m0, s59, %d' % (32768 + slot*16384 + j*4096),
                      's_add_u32 s54, %s, %d' % (jreg_off, 16384 + j*4096),
                      'buffer_load_dwordx4 %s, s[36:39], s54 offen lds' % v(LIN)])
        return L
    flat = lambda L: [x for y in L for x in y]
    for x in flat(dmaK('s65', 0)): a(x)
    a('s_add_u32 s68, s65, 65536')
    a('s_min_u32 s68, s68, s73')
    for x in flat(dmaK('s68', 1)): a(x)
    for x in flat(dmaV('s65', 0)): a(x)
    a('v_mov_b32 %s, 0' % v(L_))
    for r in range(64): a('v_mov_b32 %s, 0' % v(O + r))
    def qk(slot_imm, Sb, first=False):
        reads = []; mf = []
        for kb in range(2):
            for ks in range(8):
                i = len(reads)
                fb = FB + 4*(i % NFB)
                reads.append('ds_read_b128 %s, %s offset:%d' % (v(fb, 4), v(KAD), slot_imm + ks*2048 + kb*512))
                acc = v(Sb + 16*kb, 16)
                c0 = '0' if first else v(NEGM, 16)
                mf.append(('v_mfma_f32_32x32x16_bf16 %s, %s, %s, %s' % (acc, v(fb, 4), v(Q + 4*ks, 4), acc if ks else c0), i))
        return reads, mf
    def pv(slot_imm, base=0):
        reads = []; mf = []
        for ks in range(4):
            for db in range(4):
                i = len(reads) + base
                fb = FB + 4*(i % NFB)
                reads.append('ds_read_b128 %s, %s offset:%d' % (v(fb, 4), v(VAD), slot_imm + ks*4096 + db*512))
                acc = v(O + 16*db, 16)
                mf.append(('v_mfma_f32_32x32x16_bf16 %s, %s, %s, %s' % (acc, v(fb, 4), v(P + 4*ks, 4), acc), i))
        return reads, mf
    def mask(Sb):
        L = []
        L.append('v_mov_b32 %s, 0xff800000' % v(T + 1))
        for kb in range(2):
            for r in range(16):
                c = 32*kb + 16*(r >> 3) + (r & 7)
                L.append('v_cmp_le_i32 vcc, %d, %s' % (c, v(TAU)))
                L.append('v_cndmask_b32 %s, %s, %s, vcc' % (v(Sb + 16*kb + r), v(T + 1), v(Sb + 16*kb + r)))
        return L
    def maxpart(Sb):
        L = []
        L.append('v_max3_f32 %s, %s, %s, %s' % (v(T), v(Sb), v(Sb + 1), v(Sb + 2)))
        L.append('v_max3_f32 %s, %s, %s, %s' % (v(T + 2), v(Sb + 3), v(Sb + 4), v(Sb + 5)))
        r = 6; tog = 0
        while r + 1 < 32:
            d = T if tog == 0 else T + 2
            L.append('v_max3_f32 %s, %s, %s, %s' % (v(d), v(d), v(Sb + r), v(Sb + r + 1)))
            r += 2; tog ^= 1
        L.append('v_max_f32 %s, %s, %s' % (v(T), v(T), v(T + 2)))
        L.append('v_mov_b32 %s, %s' % (v(T + 2), v(T)))
        L.append('v_permlane32_swap_b32 %s, %s' % (v(T), v(T + 2)))
        L.append('v_max_f32 %s, %s, %s' % (v(T), v(T), v(T + 2)))
        return L
    def rescale(lbl, Sb):
        a('v_cmp_lt_f32 vcc, %s, %s' % (v(T + 3), v(T)))
        a('s_cbranch_vccz %s' % lbl)
        a('v_max_f32 %s, 0, %s' % (v(T), v(T)))
        a('v_sub_f32 %s, 0, %s' % (v(T + 2), v(T)))
        a('v_exp_f32 %s, %s' % (v(T + 2), v(T + 2)))
        for r in range(32):
            a('v_sub_f32 %s, %s, %s' % (v(Sb + r), v(Sb + r), v(T)))
        for r in range(16):
            a('v_sub_f32 %s, %s, %s' % (v(NEGM + r), v(NEGM + r), v(T)))
        a('v_mul_f32 %s, %s, %s' % (v(L_), v(L_), v(T + 2)))
        for r in range(64):
            a('v_mul_f32 %s, %s, %s' % (v(O + r), v(O + r), v(T + 2)))
        a.label(lbl)
    def exppart(Sb):
        L = []
        for ks in range(4):
            kb = ks >> 1; r0 = 8*(ks & 1)
            for q in range(4):
                r = Sb + 16*kb + r0 + 2*q
                L.append('v_exp_f32 %s, %s' % (v(r), v(r)))
                L.append('v_exp_f32 %s, %s' % (v(r + 1), v(r + 1)))
                L.append('v_add_f32 %s, %s, %s' % (v(L_), v(L_), v(r)))
                L.append('v_cvt_pk_bf16_f32 %s, %s, %s' % (v(P + 4*ks + q), v(r), v(r + 1)))
                L.append('v_add_f32 %s, %s, %s' % (v(L_), v(L_), v(r + 1)))
        return L
    def mix(dm, ex, every):
        out = []; d = 0
        for k, x in enumerate(ex):
            if k % every == 0 and d < len(dm):
                out += dm[d]; d += 1
            out.append(x)
        for y in dm[d:]: out += y
        return out
    PRE = 4
    a('s_waitcnt vmcnt(8)')
    a('s_barrier')
    rd, mf = qk(0, S[0], first=True)
    st = Stream(a, rd, 6)
    st.seg(mf, [])
    a('s_cmp_eq_u32 s67, 1')
    a('s_cbranch_scc0 L_at_nomask0')
    for x in mask(S[0]): a(x)
    a.label('L_at_nomask0')
    for x in maxpart(S[0]): a(x)
    a('v_max_f32 %s, 0x%08x, %s' % (v(T), f32bits(-1e30), v(T)))
    for r in range(32):
        a('v_sub_f32 %s, %s, %s' % (v(S[0] + r), v(S[0] + r), v(T)))
    for r in range(16):
        a('v_sub_f32 %s, 0, %s' % (v(NEGM + r), v(T)))
    a('v_mov_b32 %s, 0' % v(T))
    a('s_mov_b32 s69, 0')
    a('s_add_u32 s70, s65, 65536')
    a('s_waitcnt vmcnt(0)')
    a('s_barrier')
    rdn, _ = qk(16384, S[1])
    for x in rdn[:PRE]: a(x)
    for par in range(2):
        a.label('L_at_loop%d' % par)
        a('s_add_u32 s71, s69, 1')
        a('s_cmp_eq_u32 s71, s67')
        a('s_cbranch_scc1 L_at_last%d' % par)
        a('s_add_u32 s72, s70, 65536')
        a('s_min_u32 s72, s72, s73')
        a('s_add_u32 s71, s69, 2')
        dm = dmaK('s72', par) + dmaV('s70', par ^ 1)
        rescale('L_at_rs%d' % par, S[par])
        rdk, mfk = qk((par ^ 1)*16384, S[par ^ 1])
        rdv, mfv = pv(par*16384, 16)
        st = Stream(a, rdk + rdv, 6, pre=PRE)
        ex = exppart(S[par])
        if os.environ.get('X_NOEXP'): ex = ['s_nop 0']*80
        if os.environ.get('X_NODMA'): dm = []
        if os.environ.get('X_NOLDS'):
            st.reads = [x if (k % 2 == 0 or k < 8) else 's_nop 0' for k, x in enumerate(st.reads)]
        st.seg(mfk, mix(dm, ex[:50], 4))
        st.seg(mfv[:8], ex[50:])
        a('s_cmp_eq_u32 s71, s67')
        a('s_cbranch_scc0 L_at_nomask%d' % (par + 1))
        for x in mask(S[par ^ 1]): a(x)
        a.label('L_at_nomask%d' % (par + 1))
        st.seg(mfv[8:12], maxpart(S[par ^ 1]))
        a('s_waitcnt vmcnt(0) lgkmcnt(0)')
        a('s_barrier')
        st.waited = 10**6
        rdn, _ = qk(par*16384, S[par])
        fill = rdn[:PRE]
        st.seg(mfv[12:], fill)
        a('s_add_u32 s69, s69, 1')
        a('s_mov_b32 s70, s72')
        if par == 1:
            a('s_branch L_at_loop0')
    for par in range(2):
        a.label('L_at_last%d' % par)
        rescale('L_at_rsl%d' % par, S[par])
        ex = exppart(S[par])
        rd, mf = pv(par*16384, 4)
        st = Stream(a, [None]*4 + rd, 10, pre=4)
        for x in ex[:20]: a(x)
        st.seg(mf[:4], ex[20:40])
        st.seg(mf[4:8], ex[40:60])
        st.seg(mf[8:12], ex[60:])
        st.seg(mf[12:], [])
        if par == 0:
            a('s_branch L_at_comb')
    a.label('L_at_comb')
    if STAMPS:
        a('s_cmp_eq_u32 s63, 0')
        a('s_cbranch_scc0 L_st1')
        stamp(a, 4)
        a('s_branch L_st2')
        a.label('L_st1')
        stamp(a, 6)
        a.label('L_st2')
    a('v_sub_f32 %s, 0, %s' % (v(M), v(NEGM)))
    a('v_mov_b32 %s, %s' % (v(T), v(L_)))
    a('v_permlane32_swap_b32 %s, %s' % (v(L_), v(T)))
    a('v_add_f32 %s, %s, %s' % (v(L_), v(L_), v(T)))
    a('s_barrier')
    a('s_mul_i32 s56, s25, 8704')
    a('v_lshlrev_b32 v12, 2, v1')
    a('v_add_u32 v12, s56, v12')
    a('ds_write_b32 v12, %s offset:8192' % v(M))
    a('ds_write_b32 v12, %s offset:8448' % v(L_))
    a('v_lshlrev_b32 v13, 4, v1')
    a('v_add_u32 v13, s56, v13')
    a('s_cmp_eq_u32 s26, 0')
    a('s_cbranch_scc0 L_at_cw1')
    for q in range(8):
        a('ds_write_b128 v13, %s offset:%d' % (v(O + 32 + 4*q, 4), q*1024))
    a('s_branch L_at_cw2')
    a.label('L_at_cw1')
    for q in range(8):
        a('ds_write_b128 v13, %s offset:%d' % (v(O + 4*q, 4), q*1024))
    a.label('L_at_cw2')
    a('s_waitcnt lgkmcnt(0)')
    a('s_barrier')
    a('s_xor_b32 s57, s25, 4')
    a('s_mul_i32 s57, s57, 8704')
    a('v_lshlrev_b32 v12, 2, v1')
    a('v_add_u32 v12, s57, v12')
    a('v_lshlrev_b32 v13, 4, v1')
    a('v_add_u32 v13, s57, v13')
    a('ds_read_b32 %s, v12 offset:8192' % v(T))
    a('ds_read_b32 %s, v12 offset:8448' % v(T + 1))
    PB = 48
    for q in range(8):
        a('ds_read_b128 %s, v13 offset:%d' % (v(PB + 4*q, 4), q*1024))
    a('s_waitcnt lgkmcnt(8)')
    a('v_max_f32 %s, %s, %s' % (v(T + 2), v(T), v(M)))
    a('v_sub_f32 %s, %s, %s' % (v(T + 4), v(M), v(T + 2)))
    a('v_sub_f32 %s, %s, %s' % (v(T + 5), v(T), v(T + 2)))
    a('v_exp_f32 %s, %s' % (v(T + 4), v(T + 4)))
    a('v_exp_f32 %s, %s' % (v(T + 5), v(T + 5)))
    a('v_mul_f32 %s, %s, %s' % (v(T + 6), v(L_), v(T + 4)))
    a('v_fmac_f32 %s, %s, %s' % (v(T + 6), v(T + 1), v(T + 5)))
    a('v_rcp_f32 %s, %s' % (v(T + 6), v(T + 6)))
    a('v_mul_f32 %s, %s, %s' % (v(T + 4), v(T + 4), v(T + 6)))
    a('v_mul_f32 %s, %s, %s' % (v(T + 5), v(T + 5), v(T + 6)))
    a('s_waitcnt lgkmcnt(0)')
    a('s_lshl_b32 s56, s64, 9')
    a('s_lshl_b32 s57, s20, 4')
    a('s_add_u32 s56, s56, s57')
    a('s_lshl_b32 s57, s26, 3')
    a('s_add_u32 s56, s56, s57')
    a('s_lshl_b32 s56, s56, 11')
    a('s_lshl_b32 s57, s27, 9')
    a('s_add_u32 s56, s56, s57')
    a('v_lshrrev_b32 v12, 5, v1')
    a('v_lshlrev_b32 v12, 11, v12')
    a('v_and_b32 v13, 31, v1')
    a('v_lshlrev_b32 v13, 4, v13')
    a('v_add_u32 v12, v12, v13')
    a('v_add_u32 v12, s56, v12')
    a('s_cmp_eq_u32 s26, 0')
    a('s_cbranch_scc0 L_at_fin1')
    for gsel in range(2):
        if gsel == 1: a.label('L_at_fin1')
        own = O + 32*gsel
        for r in range(32):
            a('v_mul_f32 %s, %s, %s' % (v(own + r), v(own + r), v(T + 4)))
            a('v_fmac_f32 %s, %s, %s' % (v(own + r), v(PB + r), v(T + 5)))
        for dbl in range(2):
            for rr in range(2):
                tb_ = 80 + (dbl*2 + rr)*4
                for q in range(4):
                    a('v_cvt_pk_bf16_f32 %s, %s, %s' % (v(tb_ + q), v(own + 16*dbl + 8*rr + 2*q), v(own + 16*dbl + 8*rr + 2*q + 1)))
                a('s_mov_b32 s60, %d' % ((4*dbl + 2*rr)*2048))
                a('buffer_store_dwordx4 %s, v12, s[40:43], s60 offen' % v(tb_, 4))
        if gsel == 0: a('s_branch L_at_fin2')
    a.label('L_at_fin2')
    a('s_barrier')
    if FZ.on:
        a('s_cmp_eq_u32 s63, 0')
        a('s_cbranch_scc0 L_at_sigB')
        fz_signal(a, F2A)
        a('s_branch L_at_sigD')
        a.label('L_at_sigB')
        fz_signal(a, F2B)
        a.label('L_at_sigD')
    if STAMPS:
        a('s_cmp_eq_u32 s63, 0')
        a('s_cbranch_scc0 L_st3')
        stamp(a, 5)
        a.label('L_st3')
    a('s_add_u32 s63, s63, 1')
    a('s_mov_b32 s64, s22')
    a('s_cmp_lt_u32 s63, 2')
    a('s_cbranch_scc1 L_at_tile')
    stamp(a, 7)
    if os.environ.get('RT'):
        a('s_memrealtime s[84:85]'); a('s_waitcnt lgkmcnt(0)')
    rtstamp(a, 9); stamp_flush(a, 1, 8)
    fz_stamp(a, 6)
    a.label('L_at_end')
    if not FZ.on: a('s_endpgm')
    return name, 256, (256, 512, 163840)
```

```python
import os, sys, struct
from asmlib import *

NAME = 'sequential_preLN__compressed_kv_cla__dense_activation_gelu__prompt'

WS_XN   = 0x0000000
WS_KV   = 0x0400000
WS_CTX  = 0x2800000
WS_PART = 0x3C00000
WS_H    = 0x5400000
WS_HN   = 0x5800000
WS_G    = 0x5C00000
WS_ST   = 0x6400000
WS_CS   = 0x6480000
WS_END  = 0x6500000

KA_X, KA_CKV, KA_WQ, KA_WUK, KA_WUV, KA_WO, KA_BX, KA_W1, KA_B1, KA_W2, KA_B2, KA_OUT, KA_DBG, KA_WS = [8*i for i in range(14)]

def srd(a, sreg, lo, hi, nbytes, add=0):
    if add:
        a('s_add_u32 %s, %s, 0x%x' % (s(sreg), s(lo), add))
        a('s_addc_u32 %s, %s, 0' % (s(sreg+1), s(hi)))
    else:
        a('s_mov_b32 %s, %s' % (s(sreg), s(lo)))
        a('s_mov_b32 %s, %s' % (s(sreg+1), s(hi)))
    a('s_mov_b32 %s, 0x%x' % (s(sreg+2), nbytes))
    a('s_mov_b32 %s, 0x00020000' % s(sreg+3))

def kernel_header(a, name):
    a.raw('.globl %s' % name)
    a.raw('.p2align 8')
    a.raw('.type %s,@function' % name)
    a.label(name)

def kernel_desc(name, vgpr, sgpr=102):
    acc = (vgpr + 3) // 4 * 4
    return '''.p2align 6
.amdhsa_kernel %s
  .amdhsa_next_free_vgpr %d
  .amdhsa_next_free_sgpr %d
  .amdhsa_accum_offset %d
  .amdhsa_group_segment_fixed_size 0
  .amdhsa_kernarg_size 112
  .amdhsa_user_sgpr_count 2
  .amdhsa_user_sgpr_kernarg_segment_ptr 1
  .amdhsa_system_sgpr_workgroup_id_x 1
.end_amdhsa_kernel
''' % (name, vgpr, sgpr, acc)

def wave_sum(a, vr, tmp):
    a('v_add_f32_dpp %s, %s, %s quad_perm:[1,0,3,2] row_mask:0xf bank_mask:0xf' % (v(vr), v(vr), v(vr)))
    a('v_add_f32_dpp %s, %s, %s quad_perm:[2,3,0,1] row_mask:0xf bank_mask:0xf' % (v(vr), v(vr), v(vr)))
    a('v_add_f32_dpp %s, %s, %s row_half_mirror row_mask:0xf bank_mask:0xf' % (v(vr), v(vr), v(vr)))
    a('v_add_f32_dpp %s, %s, %s row_mirror row_mask:0xf bank_mask:0xf' % (v(vr), v(vr), v(vr)))
    a('v_mov_b32 %s, %s' % (v(tmp), v(vr)))
    a('v_permlane16_swap_b32 %s, %s' % (v(vr), v(tmp)))
    a('v_add_f32 %s, %s, %s' % (v(vr), v(vr), v(tmp)))
    a('v_mov_b32 %s, %s' % (v(tmp), v(vr)))
    a('v_permlane32_swap_b32 %s, %s' % (v(vr), v(tmp)))
    a('v_add_f32 %s, %s, %s' % (v(vr), v(vr), v(tmp)))

def layernorm_row(a, d0, has2, tmp, eps_s):
    f = tmp
    for r in range(8):
        a('v_lshlrev_b32 %s, 16, %s' % (v(f + 2*r), v(d0 + r)))
        a('v_and_b32 %s, 0xffff0000, %s' % (v(f + 2*r + 1), v(d0 + r)))
    sm = tmp + 16; t2 = tmp + 17; t3 = tmp + 18; msk = tmp + 19
    a('v_add_f32 %s, %s, %s' % (v(sm), v(f), v(f+1)))
    for r in range(2, 16):
        a('v_add_f32 %s, %s, %s' % (v(sm), v(sm), v(f + r)))
    wave_sum(a, sm, t2)
    a('v_mul_f32 %s, 0x%08x, %s' % (v(sm), f32bits(1.0/640), v(sm)))
    for r in range(16):
        a('v_sub_f32 %s, %s, %s' % (v(f + r), v(f + r), v(sm)))
    for r in range(8, 16):
        a('v_mul_f32 %s, %s, %s' % (v(f + r), v(f + r), v(msk)))
    a('v_mul_f32 %s, %s, %s' % (v(sm), v(f), v(f)))
    for r in range(1, 16):
        a('v_fmac_f32 %s, %s, %s' % (v(sm), v(f + r), v(f + r)))
    wave_sum(a, sm, t2)
    a('v_mov_b32 %s, 0x%08x' % (v(t3), f32bits(1e-5)))
    a('v_fmac_f32 %s, 0x%08x, %s' % (v(t3), f32bits(1.0/640), v(sm)))
    a('v_rsq_f32 %s, %s' % (v(t3), v(t3)))
    for r in range(16):
        a('v_mul_f32 %s, %s, %s' % (v(f + r), v(f + r), v(t3)))
    for r in range(8):
        a('v_cvt_pk_bf16_f32 %s, %s, %s' % (v(d0 + r), v(f + 2*r), v(f + 2*r + 1)))

import struct
def f32bits(x):
    return struct.unpack('<I', struct.pack('<f', x))[0]


STAMPS = bool(os.environ.get('STAMPS'))
WS_DBG = 0x8000000
def stamp(a, i):
    if not STAMPS: return
    a('s_memtime s[%d:%d]' % (80 + 2*i, 81 + 2*i))
    a('s_waitcnt lgkmcnt(0)')
def rtstamp(a, i):
    if not STAMPS: return
    a('s_memrealtime s[%d:%d]' % (80 + 2*i, 81 + 2*i))
    a('s_waitcnt lgkmcnt(0)')
def stamp_flush(a, kidx, n, wsreg=12):
    n = 10
    if not STAMPS: return
    srd(a, 76, wsreg, wsreg + 1, 16 << 20, WS_DBG)
    a('v_lshrrev_b32 v250, 6, v0') if False else None
    a('s_lshl_b32 s75, s2, 4')
    a('s_add_u32 s75, s75, s25')
    a('s_lshl_b32 s75, s75, 7')
    a('s_add_u32 s75, s75, %d' % (kidx << 20))
    a('v_mov_b32 v100, 0')
    for i in range(n):
        a('v_mov_b32 v102, s%d' % (80 + 2*i))
        a('v_mov_b32 v103, s%d' % (81 + 2*i))
        a('buffer_store_dwordx2 v[102:103], v100, s[76:79], s75 offen offset:%d' % (i*8))

def prefetch_arrays(a, arrays, tag, vdst, vtmp, lane):
    a('s_lshl_b32 s84, s2, 3')
    a('s_add_u32 s84, s84, s25')
    start = 0
    for n, (ka, nbytes) in enumerate(arrays):
        nw = (nbytes + 8191)//8192
        lbl = 'L_pf_%s_%d' % (tag, n)
        a('s_cmp_lt_u32 s84, %d' % (start + nw))
        a('s_cbranch_scc0 %s' % lbl)
        if start:
            a('s_cmp_ge_u32 s84, %d' % start)
            a('s_cbranch_scc0 %s' % lbl)
        a('s_load_dwordx2 s[86:87], s[0:1], %d' % ka)
        a('s_sub_u32 s85, s84, %d' % start)
        a('s_lshl_b32 s85, s85, 13')
        a('v_lshlrev_b32 %s, 7, %s' % (v(vtmp), v(lane)))
        a('s_waitcnt lgkmcnt(0)')
        a('s_mov_b32 s76, s86'); a('s_mov_b32 s77, s87'); a('s_mov_b32 s78, 0x%x' % nbytes); a('s_mov_b32 s79, 0x00020000')
        a('buffer_load_dword %s, %s, s[76:79], s85 offen' % (v(vdst), v(vtmp)))
        a.label(lbl)
        start += nw

WS_FLAG = 0x7000000
F1, F2A, F2B, F3, F4, F5, F1X = 0, 256, 512, 768, 1024, 1280, 1536
class FZ: on = False
SPIN_LIMIT = 400000

def fz_prologue(a):
    a('s_load_dwordx2 s[88:89], s[0:1], %d' % KA_DBG)
    a('s_load_dwordx2 s[90:91], s[0:1], %d' % KA_WS)
    a('s_memrealtime s[100:101]')
    a('v_lshrrev_b32 v2, 6, v0')
    a('v_readfirstlane_b32 s25, v2')
    a('s_waitcnt lgkmcnt(0)')
    a('s_or_b32 s100, s100, 1')
    srd(a, 96, 90, 91, 65536, WS_FLAG)
    a('s_cmp_eq_u32 s25, 0')
    a('s_cbranch_scc0 L_fz_p1')
    srd(a, 92, 88, 89, 256)
    a('s_mov_b64 exec, 1')
    a('v_mov_b32 v56, s100'); a('v_mov_b32 v57, s101'); a('v_mov_b32 v58, 0'); a('v_mov_b32 v59, 0'); a('v_mov_b32 v8, 0')
    a('buffer_atomic_cmpswap_x2 v[56:59], v8, s[92:95], 0 offen sc0 sc1')
    a('s_mov_b64 exec, -1')
    a.label('L_fz_p1')
    fz_stamp(a, 0)

_fzc = [0]
def fz_nonce_finish(a):
    if not FZ.on: return
    _fzc[0] += 1; l = 'L_fz_n%d' % _fzc[0]
    a('s_cmp_eq_u32 s25, 0')
    a('s_cbranch_scc0 %s' % l)
    a('v_readfirstlane_b32 s88, v56'); a('v_readfirstlane_b32 s89, v57')
    a('s_cmp_eq_u64 s[88:89], 0')
    a('s_cselect_b32 s100, s100, s88')
    a('s_cselect_b32 s101, s101, s89')
    a.label(l)
def fz_flag(a, base):
    if not FZ.on: return
    _fzc[0] += 1; l = 'L_fz_f%d' % _fzc[0]
    a('s_cmp_eq_u32 s25, 0')
    a('s_cbranch_scc0 %s' % l)
    a('s_lshl_b32 s88, s2, 3')
    a('s_add_u32 s88, s88, %d' % (base*8))
    a('s_mov_b64 exec, 1')
    a('v_mov_b32 v62, s100'); a('v_mov_b32 v63, s101'); a('v_mov_b32 v61, 0')
    a('buffer_store_dwordx2 v[62:63], v61, s[96:99], s88 offen sc0 sc1')
    a('s_mov_b64 exec, -1')
    a.label(l)
def fz_signal(a, base, idx_s=None):
    if not FZ.on: return
    _fzc[0] += 1; l = 'L_fz_s%d' % _fzc[0]
    a('s_waitcnt vmcnt(0)')
    a('s_barrier')
    a('s_cmp_eq_u32 s25, 0')
    a('s_cbranch_scc0 %s' % l)
    a('s_lshl_b32 s88, s2, 3')
    a('s_add_u32 s88, s88, %d' % (base*8))
    a('s_mov_b64 exec, 1')
    a('v_mov_b32 v248, s100'); a('v_mov_b32 v249, s101'); a('v_mov_b32 v250, 0')
    a('buffer_store_dwordx2 v[248:249], v250, s[96:99], s88 offen sc0 sc1')
    a('s_mov_b64 exec, -1')
    a.label(l)

def fz_wait(a, nflags, idx_code, tmp=4):
    if not FZ.on: return
    _fzc[0] += 1; l = 'L_fz_w%d' % _fzc[0]
    a('s_cmp_eq_u32 s25, 0')
    a('s_cbranch_scc0 %sd' % l)
    a('v_and_b32 %s, 63, v0' % v(tmp + 1))
    a('v_min_u32 %s, %d, %s' % (v(tmp + 1), nflags - 1, v(tmp + 1)))
    idx_code(a, tmp, tmp + 1)
    a('v_lshlrev_b32 %s, 3, %s' % (v(tmp), v(tmp)))
    a('s_mov_b32 s88, 0')
    a.label(l)
    a('buffer_load_dwordx2 %s, %s, s[96:99], 0 offen sc0 sc1' % (v(tmp + 2, 2), v(tmp)))
    a('s_waitcnt vmcnt(0)')
    a('v_cmp_eq_u64 vcc, s[100:101], %s' % v(tmp + 2, 2))
    a('s_add_u32 s88, s88, 1')
    a('s_cmp_eq_u64 vcc, exec')
    a('s_cbranch_scc1 %sd' % l)
    a('s_sleep 1')
    a('s_cmp_lt_u32 s88, %d' % SPIN_LIMIT)
    a('s_cbranch_scc1 %s' % l)
    a.label(l + 'd')
    a('s_barrier')

FSTAMP = bool(os.environ.get('FSTAMP'))
def fz_stamp(a, idx):
    if not (FZ.on and FSTAMP): return
    _fzc[0] += 1; l = 'L_fz_t%d' % _fzc[0]
    a('s_cmp_eq_u32 s25, 0')
    a('s_cbranch_scc0 %s' % l)
    a('s_memrealtime s[88:89]')
    a('s_lshl_b32 s90, s2, 6')
    a('s_add_u32 s90, s90, %d' % (32768 + idx*4))
    a('s_waitcnt lgkmcnt(0)')
    a('s_mov_b64 exec, 1')
    a('v_mov_b32 v42, s88'); a('v_mov_b32 v43, 0')
    a('buffer_store_dword v42, v43, s[96:99], s90 offen')
    a('s_mov_b64 exec, -1')
    a.label(l)
```

```python
from asmlib import *
from common import *

def magic_div(a, dst, src, d, tmp_s):
    m = (1 << 32) // d + 1
    a('s_mov_b32 %s, 0x%x' % (s(tmp_s), m))
    a('v_mul_hi_u32 %s, %s, %s' % (v(dst), s(tmp_s), v(src)))

class G: pass
FOLD = bool(os.environ.get('FOLD'))

def gen_gemm(a, c):
    name = c.name; P = '%s_' % name
    NWC = c.wm*c.wn*c.wk
    NW = 8 if FZ.on else getattr(c, 'NWL', NWC)
    TM = c.BM // c.wm; TN = c.BN // c.wn
    MT = TM // 32; NT = TN // 32
    BK = getattr(c, 'BK', 64)
    KS = (BK//16) // c.wk
    pitch = c.BM*2
    WB = BK*pitch
    XB = (BK//8)*c.BN*16
    STG = WB + XB
    nWblk = WB // 1024; nXblk = XB // 1024
    assert WB % 1024 == 0 and XB % 1024 == 0
    if not FZ.on: kernel_header(a, name)
    a('s_cmp_ge_u32 s2, %d' % c.grid)
    a('s_cbranch_scc1 %send' % P)
    a('s_load_dwordx2 s[4:5], s[0:1], %d' % c.W_ka)
    a('s_load_dwordx2 s[12:13], s[0:1], %d' % KA_WS)
    c.loadargs(a)
    stamp(a, 0)
    rtstamp(a, 8)
    a('v_lshrrev_b32 v2, 6, v0')
    a('v_and_b32 v1, 63, v0')
    a('v_readfirstlane_b32 s25, v2')
    c.decode(a)
    a('s_waitcnt lgkmcnt(0)')
    srd(a, 28, 4, 5, c.W_bytes)
    srd(a, 32, 12, 13, 2048*c.X_nc*16, c.X_ws)
    nblk = nWblk + nXblk
    per = (nblk + NW - 1) // NW
    if pitch % 256 == 0: swz = 'k3'
    elif pitch == 128: swz = 'k1'
    elif pitch % 256 in (64, 192): swz = None
    else: raise ValueError('pitch')
    cpr = pitch // 16
    VD = 8
    a('s_lshl_b32 s53, s25, 10')
    a('v_lshlrev_b32 v3, 4, v1')
    lanes_slots = []
    for j in range(per):
        lo = j*NW; hi_ = j*NW + NW - 1
        kindW = hi_ < nWblk; kindX = lo >= nWblk
        lanes_slots.append('W' if kindW else ('X' if kindX else 'M'))
    def w_voff(dst, j):
        a('s_add_u32 s54, s25, %d' % (j*NW))
        a('s_lshl_b32 s54, s54, 6')
        a('v_add_u32 v4, s54, v1')
        if cpr & (cpr - 1) == 0:
            sh = cpr.bit_length() - 1
            a('v_lshrrev_b32 v5, %d, v4' % sh)
            a('v_and_b32 v6, %d, v4' % (cpr - 1))
        else:
            magic_div(a, 5, 4, cpr, 55)
            a('v_mul_u32_u24 v6, %d, v5' % cpr)
            a('v_sub_u32 v6, v4, v6')
        if swz == 'k3':
            a('v_and_b32 v7, 3, v5'); a('v_lshlrev_b32 v7, 2, v7'); a('v_xor_b32 v6, v6, v7')
        elif swz == 'k1':
            a('v_lshrrev_b32 v7, 1, v5'); a('v_and_b32 v7, 1, v7'); a('v_lshlrev_b32 v7, 2, v7'); a('v_xor_b32 v6, v6, v7')
        a('v_mul_u32_u24 v5, %d, v5' % c.W_pitch) if c.W_pitch < (1 << 16) else None
        a('v_lshlrev_b32 v6, 4, v6')
        a('v_add_u32 %s, v5, v6' % v(dst))
    def x_voff(dst, j):
        a('s_add_u32 s54, s25, %d' % (j*NW - nWblk))
        a('s_lshl_b32 s54, s54, 10')
        a('v_add_u32 v4, s54, v3')
        rowb = c.BN*16
        sh = rowb.bit_length() - 1
        a('v_lshrrev_b32 v5, %d, v4' % sh)
        a('v_and_b32 v6, %d, v4' % (rowb - 1))
        a('v_lshlrev_b32 v5, 11, v5')
        if c.BN > 128:
            a('v_lshrrev_b32 v7, 11, v6')
            a('v_and_b32 v6, 2047, v6')
            a('v_mul_u32_u24 v7, %d, v7' % (c.X_nc*2048))
            a('v_add_u32 v5, v5, v7')
        a('v_add_u32 %s, v5, v6' % v(dst))
    VX = VD + per
    for j, kind in enumerate(lanes_slots):
        if kind == 'W': w_voff(VD + j, j)
        elif kind == 'X': x_voff(VD + j, j)
        else:
            w_voff(VD + j, j); x_voff(VX, j)
    a('s_mul_i32 s51, s22, %d' % c.W_pitch)
    a('s_lshl_b32 s54, s20, 1')
    a('s_add_u32 s51, s51, s54')
    a('s_lshr_b32 s52, s21, 7')
    a('s_mul_i32 s52, s52, %d' % c.X_nc)
    a('s_lshr_b32 s54, s22, 3')
    a('s_add_u32 s52, s52, s54')
    a('s_lshl_b32 s52, s52, 11')
    a('s_and_b32 s54, s21, 127')
    a('s_lshl_b32 s54, s54, 4')
    a('s_add_u32 s52, s52, s54')
    lblc = [0]
    def dma(st):
        buf = (st % c.NSTG)*STG
        L = []
        for j, kind in enumerate(lanes_slots):
            full = (j*NW + NW - 1) < nblk
            def one(k, reg):
                o = []
                o.append('s_add_u32 m0, s53, %d' % (buf + j*NW*1024))
                if k == 'W':
                    o.append('s_add_u32 s54, s51, %d' % (st*BK*c.W_pitch))
                    o.append('buffer_load_dwordx4 %s, s[28:31], s54 offen lds' % v(reg))
                else:
                    o.append('s_add_u32 s54, s52, %d' % (st*(BK//8)*2048))
                    o.append('buffer_load_dwordx4 %s, s[32:35], s54 offen lds' % v(reg))
                return o
            if kind in 'WX' and full:
                L.append(('plain', one(kind, VD + j)))
            else:
                L.append(('cond', j, kind, one('W', VD + j), one('X', VX if kind == 'M' else VD + j)))
        return L
    def emit_dma_items(items, emit):
        for it in items:
            if it[0] == 'plain':
                for x in it[1]: emit(x)
            else:
                _, j, kind, ow, ox = it
                lblc[0] += 1; l1 = '%sd%da' % (P, lblc[0]); l2 = '%sd%db' % (P, lblc[0])
                if kind == 'M':
                    emit('s_cmp_lt_u32 s25, %d' % (nWblk - j*NW))
                    emit('s_cbranch_scc0 %s' % l1)
                    for x in ow: emit(x)
                    emit('s_branch %s' % l2)
                    emit(l1 + ':')
                    if (j*NW + NW - 1) >= nblk:
                        emit('s_cmp_lt_u32 s25, %d' % (nblk - j*NW))
                        emit('s_cbranch_scc0 %s' % l2)
                    for x in ox: emit(x)
                    emit(l2 + ':')
                else:
                    emit('s_cmp_lt_u32 s25, %d' % (nblk - j*NW))
                    emit('s_cbranch_scc0 %s' % l2)
                    for x in (ow if kind == 'W' else ox): emit(x)
                    emit(l2 + ':')
    Dmin = nblk // NW
    def flat_dma(st):
        L = []
        emit_dma_items(dma(st), L.append)
        return L
    RAMP = getattr(c, 'ramp', 2)
    nissued = min(RAMP, c.NSTG, c.NK)
    first_wait = Dmin*(nissued - 1)
    if FZ.on:
        wslots = [j for j, kind in enumerate(lanes_slots) if kind == 'W' and (j*NW + NW - 1) < nblk]
        for st in range(nissued):
            its = dma(st)
            emit_dma_items([its[j] for j in wslots], a)
        fz_wait(a, c.nwait, c.idx_wait, tmp=40)
        fz_stamp(a, c.fst)
        for st in range(nissued):
            its = dma(st)
            emit_dma_items([its[j] for j in range(len(its)) if j not in wslots], a)
        first_wait = (Dmin - len(wslots))*(nissued - 1)
    else:
        for st in range(nissued):
            for x in flat_dma(st): a(x)
    a('s_mov_b32 s56, 0')
    if c.wm == 1:
        a('s_mov_b32 s26, 0'); a('s_mov_b32 s57, s25')
    else:
        a('s_mul_hi_u32 s57, s25, 0x%x' % ((1 << 32)//c.wm + 1))
        a('s_mul_i32 s58, s57, %d' % c.wm)
        a('s_sub_u32 s26, s25, s58')
    assert c.wn & (c.wn - 1) == 0
    a('s_and_b32 s27, s57, %d' % (c.wn - 1))
    a('s_lshr_b32 s24, s57, %d' % (c.wn.bit_length() - 1))
    pi = c.pi
    a('v_and_b32 v4, 3, v1')
    if pi:
        a('v_and_b32 v5, 1, v4'); a('v_lshlrev_b32 v5, 1, v5'); a('v_lshrrev_b32 v6, 1, v4'); a('v_or_b32 v4, v5, v6')
    a('v_lshrrev_b32 v5, 1, v4')
    a('v_and_b32 v4, 1, v4')
    a('v_lshlrev_b32 v4, 3, v4')
    a('v_lshrrev_b32 v6, 4, v1'); a('v_and_b32 v6, 1, v6'); a('v_lshlrev_b32 v6, 1, v6')
    a('v_add_u32 v5, v5, v6')
    a('s_mul_i32 s57, s26, %d' % (MT*4))
    a('v_add_u32 v5, s57, v5')
    a('v_lshrrev_b32 v6, 2, v1'); a('v_and_b32 v6, 3, v6')
    a('v_lshrrev_b32 v7, 5, v1'); a('v_lshlrev_b32 v7, 3, v7'); a('v_add_u32 v7, v7, v6')
    a('s_mul_i32 s57, s24, %d' % (16*KS))
    a('v_add_u32 v7, s57, v7')
    a('v_mul_u32_u24 v7, %d, v7' % pitch)
    a('v_add_u32 v7, v7, v4')
    WA = VX + 1
    if swz is None:
        nwa = 1
        a('v_lshlrev_b32 v5, 4, v5')
        a('v_add_u32 %s, v7, v5' % v(WA))
    else:
        nwa = MT
        if swz == 'k3': a('v_lshlrev_b32 v6, 2, v6')
        else:
            a('v_lshrrev_b32 v6, 1, v6'); a('v_lshlrev_b32 v6, 2, v6')
        for i in range(MT):
            a('v_add_u32 v4, %d, v5' % (4*i))
            a('v_xor_b32 v4, v4, v6')
            a('v_lshlrev_b32 v4, 4, v4')
            a('v_add_u32 %s, v7, v4' % v(WA + i))
    for stg in range(1, c.NSTG):
        for i in range(nwa):
            a('v_add_u32 %s, %d, %s' % (v(WA + stg*nwa + i), stg*STG, v(WA + i)))
    XA = WA + nwa*c.NSTG
    a('v_lshrrev_b32 v4, 5, v1')
    a('s_mul_i32 s57, s24, %d' % (2*KS))
    a('v_add_u32 v4, s57, v4')
    a('v_mul_u32_u24 v4, %d, v4' % (c.BN*16))
    a('v_and_b32 v5, 31, v1'); a('v_lshlrev_b32 v5, 4, v5')
    a('v_add_u32 v4, v4, v5')
    a('s_mul_i32 s57, s27, %d' % (TN*16))
    a('s_add_u32 s57, s57, %d' % WB)
    a('v_add_u32 %s, s57, v4' % v(XA))
    for stg in range(1, c.NSTG):
        a('v_add_u32 %s, %d, %s' % (v(XA + stg), stg*STG, v(XA)))
    nfr = MT*4 + NT*4
    FR = (XA + c.NSTG + 3)//4*4
    ACC = FR + 2*nfr
    nacc = MT*NT*16
    assert ACC + nacc <= 256, (ACC, nacc)
    for r in range(nacc): a('v_mov_b32 %s, 0' % v(ACC + r))
    def reads(st, kk, fs):
        b = st % c.NSTG; base = FR + nfr*fs
        L = []
        for j in range(NT):
            L.append('ds_read_b128 %s, %s offset:%d' % (v(base + MT*4 + 4*j, 4), v(XA + b), kk*2*c.BN*16 + j*512))
        for i in range(MT):
            for T in range(2):
                if swz is None:
                    L.append('ds_read_b64_tr_b16 %s, %s offset:%d' % (v(base + 4*i + 2*T, 2), v(WA + b), (kk*16 + T*4)*pitch + i*64))
                else:
                    L.append('ds_read_b64_tr_b16 %s, %s offset:%d' % (v(base + 4*i + 2*T, 2), v(WA + b*nwa + i), (kk*16 + T*4)*pitch))
        return L
    def mfmas(fs):
        base = FR + nfr*fs
        L = []
        for i in range(MT):
            for j in range(NT):
                acc = v(ACC + (i*NT + j)*16, 16)
                L.append('v_mfma_f32_32x32x16_bf16 %s, %s, %s, %s' % (acc, v(base + 4*i, 4), v(base + MT*4 + 4*j, 4), acc))
        return L
    nm = MT*NT
    def per_for(n): return max(1, (n + nm - 1)//nm)
    stamp(a, 1)
    nissued0 = nissued
    if NWC < NW:
        a('s_cmp_lt_u32 s25, %d' % NWC)
        a('s_cbranch_scc0 %sdmaonly' % P)
    for comp in ([True, False] if NWC < NW else [True]):
        nissued = nissued0
        if not comp: a.label('%sdmaonly' % P)
        a('s_waitcnt vmcnt(%d)' % first_wait)
        a('s_barrier')
        if comp: stamp(a, 2)
        for _ in range(2):
            if nissued < min(c.NSTG, c.NK):
                for x in flat_dma(nissued): a(x)
                nissued += 1
        if comp:
            for x in reads(0, 0, 0): a(x)
        step = 0
        for st in range(c.NK):
            for kk in range(KS):
                fs = step & 1; step += 1
                if kk < KS - 1:
                    if comp:
                        a('s_waitcnt lgkmcnt(0)')
                        rd = reads(st, kk + 1, fs ^ 1)
                        for x in interleave(mfmas(fs), rd, per=per_for(len(rd))): a(x)
                elif st + 1 < c.NK:
                    rem = nissued - 1 - (st + 1)
                    a('s_waitcnt vmcnt(%d) lgkmcnt(0)' % (Dmin*rem))
                    a('s_barrier')
                    if comp:
                        rd = reads(st + 1, 0, fs ^ 1)
                        for x in interleave(mfmas(fs), rd, per=per_for(len(rd))): a(x)
                    while nissued <= st + c.NSTG and nissued < c.NK:
                        for x in flat_dma(nissued): a(x)
                        nissued += 1
                elif comp:
                    a('s_waitcnt lgkmcnt(0)')
                    for x in mfmas(fs): a(x)
        if comp and NWC < NW:
            a('s_branch %scomp_done' % P)
        if not comp:
            assert c.wk == 1 and not hasattr(c, 'post')
            a('s_branch %sfin2' % P)
            a.label('%scomp_done' % P)
    stamp(a, 3)
    ctx = G(); ctx.ACC = ACC; ctx.MT = MT; ctx.NT = NT; ctx.FR = FR; ctx.TM = TM; ctx.TN = TN; ctx.P = P
    nq = nacc//4
    if c.wk > 1:
        assert c.wk == 2
        a('s_barrier')
        half = NWC // 2
        hq = nq // 2
        a('s_mul_i32 s57, s25, %d' % (hq*1024))
        a('s_add_u32 s58, s25, %d' % half)
        a('s_cmp_ge_u32 s58, %d' % NWC)
        a('s_cselect_b32 s59, %d, 0' % NWC)
        a('s_sub_u32 s58, s58, s59')
        a('s_mul_i32 s58, s58, %d' % (hq*1024))
        a('v_lshlrev_b32 v4, 4, v1')
        a('v_add_u32 v5, s58, v4')
        a('v_add_u32 v4, s57, v4')
        a('s_cmp_lt_u32 s25, %d' % half)
        a('s_cbranch_scc0 %sred1' % P)
        for hsel in range(2):
            if hsel == 1: a.label('%sred1' % P)
            mine = list(range(0, hq)) if hsel == 0 else list(range(hq, nq))
            other = list(range(hq, nq)) if hsel == 0 else list(range(0, hq))
            for n_, q in enumerate(other):
                a('ds_write_b128 v4, %s offset:%d' % (v(ACC + 4*q, 4), n_*1024))
            a('s_waitcnt lgkmcnt(0)')
            a('s_barrier')
            for n_, q in enumerate(mine):
                a('ds_read_b128 %s, v5 offset:%d' % (v(ACC + 4*other[n_], 4), n_*1024))
            a('s_waitcnt lgkmcnt(0)')
            for n_, q in enumerate(mine):
                for e in range(4):
                    a('v_add_f32 %s, %s, %s' % (v(ACC + 4*q + e), v(ACC + 4*q + e), v(ACC + 4*other[n_] + e)))
            stamp(a, 4)
            ctx.quads = mine; ctx.tag = 'h%d' % hsel
            c.epi(a, ctx)
            if hsel == 0: a('s_branch %sfin' % P)
        a.label('%sfin' % P)
        if hasattr(c, 'post'): c.post(a, ctx)
    else:
        ctx.quads = list(range(nq)); ctx.tag = 'h0'
        c.epi(a, ctx)
    stamp(a, 5)
    if STAMPS:
        a('s_waitcnt vmcnt(0)')
        stamp(a, 6)
        rtstamp(a, 9); stamp_flush(a, c.kidx, 7)
    a.label('%sfin2' % P)
    if FZ.on and getattr(c, 'sig', None) is not None: fz_signal(a, c.sig)
    fz_stamp(a, c.fst + 1)
    a.label('%send' % P)
    if not FZ.on: a('s_endpgm')
    lds = max(c.NSTG*STG, NWC*(nacc//8)*1024 if c.wk > 1 else 0, 32768 + 4096 if hasattr(c, 'post') else 0)
    return name, getattr(c, "vgpr", 256), (c.grid, 64*NW, lds)

def cfg_oproj():
    c = G(); c.kidx = 2; c.name = 'oproj_kernel'; c.BM = 160; c.BN = 128; c.NK = 16; c.NSTG = 4; c.wm = 1; c.wn = 4; c.wk = 2
    c.W_ka = KA_WO; c.W_pitch = 1280; c.W_bytes = 4096*640*2; c.X_ws = WS_CTX; c.X_nc = 512; c.grid = 256; c.pi = False
    def loadargs(a): pass
    def decode(a):
        a('s_and_b32 s19, s2, 3')
        a('s_lshr_b32 s23, s2, 2'); a('s_and_b32 s23, s23, 1'); a('s_lshl_b32 s23, s23, 3')
        a('s_lshr_b32 s21, s2, 3')
        a('s_and_b32 s24, s21, 3')
        a('s_lshr_b32 s21, s21, 2')
        a('s_add_u32 s23, s23, s21')
        a('s_mul_i32 s20, s24, 160')
        a('s_lshl_b32 s21, s23, 7')
        a('s_lshl_b32 s22, s19, 10')
    def epi(a, x):
        srd(a, 36, 12, 13, 4*2048*640*4, WS_PART)
        a('s_lshr_b32 s57, s21, 7')
        a('s_lshl_b32 s58, s19, 4')
        a('s_add_u32 s57, s57, s58')
        a('s_mul_i32 s57, s57, 160')
        a('s_lshr_b32 s58, s20, 2')
        a('s_add_u32 s57, s57, s58')
        a('s_lshl_b32 s57, s57, 11')
        a('s_lshl_b32 s58, s27, 9')
        a('s_add_u32 s57, s57, s58')
        a('v_lshrrev_b32 v4, 5, v1'); a('v_lshlrev_b32 v4, 11, v4')
        a('v_and_b32 v5, 31, v1'); a('v_lshlrev_b32 v5, 4, v5')
        a('v_add_u32 v4, v4, v5')
        a('v_add_u32 v4, s57, v4')
        for qq in x.quads:
            i, q = divmod(qq, 4)
            a('s_mov_b32 s60, %d' % ((8*i + 2*q)*2048))
            a('buffer_store_dwordx4 %s, v4, s[36:39], s60 offen' % v(x.ACC + i*16 + 4*q, 4))
    def idx_wait(a, d, l):
        a('s_lshr_b32 s88, s21, 7')
        a('s_sub_u32 s89, 15, s88')
        a('s_cmp_lt_u32 s88, 8')
        a('s_cselect_b32 s88, s88, s89')
        a('s_mov_b32 s87, %d' % F2B)
        a('s_cselect_b32 s89, %d, s87' % F2A)
        a('s_lshl_b32 s88, s88, 5')
        a('s_add_u32 s88, s88, s89')
        a('s_lshl_b32 s89, s19, 3')
        a('v_add_u32 %s, s89, %s' % (v(d + 2), v(l)))
        a('v_and_b32 %s, 3, %s' % (v(d), v(d + 2)))
        a('v_lshlrev_b32 %s, 3, %s' % (v(d), v(d)))
        a('v_lshrrev_b32 %s, 2, %s' % (v(d + 2), v(d + 2)))
        a('v_add_u32 %s, %s, %s' % (v(d), v(d), v(d + 2)))
        a('v_add_u32 %s, s88, %s' % (v(d), v(d)))
    c.nwait = 8; c.idx_wait = idx_wait; c.sig = F3; c.fst = 7
    c.loadargs = loadargs; c.decode = decode; c.epi = epi
    return c


def cfg_oprojF():
    c = G(); c.kidx = 2; c.name = 'oproj_kernel'; c.BM = 160; c.BN = 32; c.BK = 128; c.NK = 32; c.NSTG = 3; c.wm = 5; c.wn = 1; c.wk = 2
    c.vgpr = 128; c.W_ka = KA_WO; c.W_pitch = 1280; c.W_bytes = 4096*640*2; c.X_ws = WS_CTX; c.X_nc = 512; c.grid = 256; c.pi = True
    def loadargs(a):
        a('s_load_dwordx2 s[14:15], s[0:1], %d' % KA_X)
    def decode(a):
        a('s_and_b32 s21, s2, 7'); a('s_lshl_b32 s21, s21, 3')
        a('s_lshr_b32 s20, s2, 3')
        a('s_lshr_b32 s22, s20, 2')
        a('s_add_u32 s21, s21, s22'); a('s_lshl_b32 s21, s21, 5')
        a('s_and_b32 s19, s20, 3'); a('s_mul_i32 s20, s19, 160')
        a('s_mov_b32 s22, 0')
    def epi(a, x):
        srd(a, 36, 14, 15, 2048*640*2)
        srd(a, 44, 12, 13, 2048*640*2, WS_H)
        srd(a, 40, 12, 13, 2048*32, WS_ST)
        a('s_lshl_b32 s57, s26, 5')
        a('s_add_u32 s57, s57, s20')
        a('s_lshl_b32 s58, s57, 1')
        rrs = sorted(set((qq % 4)//2 for qq in x.quads))
        assert len(rrs) == 1
        rr = rrs[0]
        B = x.FR
        a('v_lshrrev_b32 v4, 5, v1')
        a('v_and_b32 v7, 31, v1')
        a('v_add_u32 v5, s21, v7')
        a('v_mul_u32_u24 v5, 1280, v5')
        a('v_lshlrev_b32 v6, 4, v4')
        a('v_add_u32 v5, v5, v6')
        a('buffer_load_dwordx4 %s, v5, s[36:39], s58 offen offset:%d' % (v(B, 4), 32*rr))
        a('s_lshr_b32 s59, s21, 7'); a('s_mul_i32 s59, s59, 80')
        a('s_lshr_b32 s60, s57, 3'); a('s_add_u32 s59, s59, s60'); a('s_lshl_b32 s59, s59, 11')
        a('s_and_b32 s60, s21, 127'); a('s_lshl_b32 s60, s60, 4'); a('s_add_u32 s59, s59, s60')
        a('s_add_u32 s59, s59, %d' % (rr*4096))
        a('v_lshlrev_b32 v6, 11, v4')
        a('v_lshlrev_b32 v5, 4, v7')
        a('v_add_u32 v6, v6, v5')
        ac = x.ACC + 8*rr
        T = 96
        for q in range(4):
            a('v_cvt_pk_bf16_f32 %s, %s, %s' % (v(T + 4 + q), v(ac + 2*q), v(ac + 2*q + 1)))
        a('s_waitcnt vmcnt(0)')
        for e in range(4):
            a('v_lshlrev_b32 %s, 16, %s' % (v(T), v(T + 4 + e)))
            a('v_and_b32 %s, 0xffff0000, %s' % (v(T + 1), v(T + 4 + e)))
            a('v_lshlrev_b32 %s, 16, %s' % (v(T + 2), v(B + e)))
            a('v_and_b32 %s, 0xffff0000, %s' % (v(T + 3), v(B + e)))
            a('v_add_f32 %s, %s, %s' % (v(T), v(T), v(T + 2)))
            a('v_add_f32 %s, %s, %s' % (v(T + 1), v(T + 1), v(T + 3)))
            a('v_cvt_pk_bf16_f32 %s, %s, %s' % (v(T + 8 + e), v(T), v(T + 1)))
        a('buffer_store_dwordx4 %s, v6, s[44:47], s59 offen' % v(T + 8, 4))
        a('v_mov_b32 %s, 0' % v(T + 12)); a('v_mov_b32 %s, 0' % v(T + 13))
        for e in range(4):
            a('v_lshlrev_b32 %s, 16, %s' % (v(T), v(T + 8 + e)))
            a('v_and_b32 %s, 0xffff0000, %s' % (v(T + 1), v(T + 8 + e)))
            a('v_add_f32 %s, %s, %s' % (v(T + 12), v(T + 12), v(T)))
            a('v_fmac_f32 %s, %s, %s' % (v(T + 13), v(T), v(T)))
            a('v_add_f32 %s, %s, %s' % (v(T + 12), v(T + 12), v(T + 1)))
            a('v_fmac_f32 %s, %s, %s' % (v(T + 13), v(T + 1), v(T + 1)))
        for r in (T + 12, T + 13):
            a('v_mov_b32 %s, %s' % (v(T), v(r)))
            a('v_permlane32_swap_b32 %s, %s' % (v(r), v(T)))
            a('v_add_f32 %s, %s, %s' % (v(r), v(r), v(T)))
        a('s_lshl_b32 s60, s25, 8')
        a('v_lshlrev_b32 v5, 3, v7')
        a('v_add_u32 v6, s60, v5')
        a('ds_write_b64 v6, %s offset:32768' % v(T + 12, 2))
        x.post = True
    def post(a, x):
        T = 96
        a('s_waitcnt lgkmcnt(0)')
        a('s_barrier')
        a('s_cmp_eq_u32 s25, 0')
        a('s_cbranch_scc0 %spost' % x.P)
        for w in range(10):
            a('ds_read_b64 %s, v5 offset:%d' % (v(T + 2*w, 2), 32768 + 256*w))
        a('s_waitcnt lgkmcnt(0)')
        for w in range(1, 10):
            a('v_add_f32 %s, %s, %s' % (v(T), v(T), v(T + 2*w)))
            a('v_add_f32 %s, %s, %s' % (v(T + 1), v(T + 1), v(T + 2*w + 1)))
        a('v_add_u32 v6, s21, v7')
        a('v_lshlrev_b32 v6, 5, v6')
        a('s_lshl_b32 s60, s19, 3')
        a('buffer_store_dwordx2 %s, v6, s[40:43], s60 offen' % v(T, 2))
        a.label('%spost' % x.P)
    c.loadargs = loadargs; c.decode = decode; c.epi = epi; c.post = post
    return c

def gelu_ops(a, x, t1, t2):
    k1 = -2*0.7978845608028654*1.4426950408889634
    k2 = k1*0.044715
    a('v_mul_f32 %s, %s, %s' % (v(t1), v(x), v(x)))
    a('v_fma_f32 %s, %s, s62, s63' % (v(t1), v(t1))) if False else None
    a('v_mul_f32 %s, s62, %s' % (v(t1), v(t1)))
    a('v_add_f32 %s, s63, %s' % (v(t1), v(t1)))
    a('v_mul_f32 %s, %s, %s' % (v(t1), v(t1), v(x)))
    a('v_exp_f32 %s, %s' % (v(t1), v(t1)))
    a('v_add_f32 %s, 1.0, %s' % (v(t1), v(t1)))
    a('v_rcp_f32 %s, %s' % (v(t1), v(t1)))
    a('v_mul_f32 %s, %s, %s' % (v(x), v(x), v(t1)))

def cfg_ffn1():
    c = G(); c.kidx = 4; c.name = 'ffn1_kernel'; c.BM = 64; c.BN = 256; c.NK = 10; c.NSTG = 4; c.wm = 1; c.wn = 4; c.wk = 2
    c.W_ka = KA_W1; c.W_pitch = 3456; c.W_bytes = 640*1728*2; c.X_ws = WS_H if FOLD else WS_HN; c.X_nc = 80; c.grid = 216; c.pi = True
    def loadargs(a):
        a('s_load_dwordx2 s[14:15], s[0:1], %d' % KA_B1)
    def decode(a):
        a('s_and_b32 s21, s2, 7'); a('s_lshl_b32 s21, s21, 8')
        a('s_lshr_b32 s20, s2, 3'); a('s_lshl_b32 s20, s20, 6')
        a('s_mov_b32 s22, 0')
    def epi(a, x):
        srd(a, 36, 12, 13, 2048*1728*2, WS_G)
        srd(a, 40, 14, 15, 1728*2)
        k1 = -2*0.7978845608028654*1.4426950408889634
        a('v_mov_b32 v6, 0x%08x' % f32bits(k1*0.044715))
        a('s_mov_b32 s63, 0x%08x' % f32bits(k1))
        a('v_lshrrev_b32 v4, 5, v1')
        a('v_lshlrev_b32 v5, 4, v4')
        a('s_lshl_b32 s57, s20, 1')
        B = x.FR
        units = sorted(set((qq//4//x.NT, (qq//4) % x.NT, (qq % 4)//2) for qq in x.quads))
        irs = sorted(set((i, rr) for (i, j, rr) in units))
        for (i, rr) in irs:
            a('buffer_load_dwordx4 %s, v5, s[40:43], s57 offen offset:%d' % (v(B + (i*2 + rr)*4, 4), (32*i + 16*rr)*2))
        a('s_lshl_b32 s58, s27, 6')
        a('s_add_u32 s58, s58, s21')
        if FOLD:
            srd(a, 44, 12, 13, 2048*32, WS_ST)
            srd(a, 48, 12, 13, 1728*4, WS_CS)
            CSR = 200; STR = 216
            a('v_lshlrev_b32 v7, 5, v4')
            a('s_lshl_b32 s61, s20, 2')
            for n_, (i, rr) in enumerate(irs):
                for hh in range(2):
                    a('buffer_load_dwordx4 %s, v7, s[48:51], s61 offen offset:%d' % (v(CSR + n_*8 + hh*4, 4), (32*i + 16*rr)*4 + hh*16))
            a('v_and_b32 v7, 31, v1')
            a('v_add_u32 v7, s58, v7')
            a('v_lshlrev_b32 v7, 5, v7')
            for j in range(x.NT):
                for hh in range(2):
                    a('buffer_load_dwordx4 %s, v7, s[44:47], 0 offen offset:%d' % (v(STR + j*8 + hh*4, 4), j*1024 + hh*16))
        a('s_lshr_b32 s59, s58, 7')
        a('s_mul_i32 s59, s59, 216')
        a('s_lshr_b32 s60, s20, 3')
        a('s_add_u32 s59, s59, s60')
        a('s_lshl_b32 s59, s59, 11')
        a('s_and_b32 s58, s58, 127')
        a('s_lshl_b32 s58, s58, 4')
        a('s_add_u32 s59, s59, s58')
        a('v_lshlrev_b32 v4, 11, v4')
        a('v_and_b32 v5, 31, v1'); a('v_lshlrev_b32 v5, 4, v5')
        a('v_add_u32 v4, v4, v5')
        a('v_add_u32 v4, s59, v4')
        a('s_waitcnt vmcnt(0)')
        T = B + 16
        cnt = 0
        if FOLD:
            MU = 232; RS = 236
            for j in range(x.NT):
                b0 = STR + j*8
                a('v_add_f32 %s, %s, %s' % (v(b0), v(b0), v(b0 + 2)))
                a('v_add_f32 %s, %s, %s' % (v(b0 + 4), v(b0 + 4), v(b0 + 6)))
                a('v_add_f32 %s, %s, %s' % (v(b0 + 1), v(b0 + 1), v(b0 + 3)))
                a('v_add_f32 %s, %s, %s' % (v(b0 + 5), v(b0 + 5), v(b0 + 7)))
                a('v_add_f32 %s, %s, %s' % (v(b0), v(b0), v(b0 + 4)))
                a('v_add_f32 %s, %s, %s' % (v(b0 + 1), v(b0 + 1), v(b0 + 5)))
                a('v_mul_f32 %s, 0x%08x, %s' % (v(MU + j), f32bits(1.0/640), v(b0)))
                a('v_mul_f32 %s, 0x%08x, %s' % (v(b0 + 1), f32bits(1.0/640), v(b0 + 1)))
                a('v_fma_f32 %s, -%s, %s, %s' % (v(b0 + 1), v(MU + j), v(MU + j), v(b0 + 1)))
                a('v_max_f32 %s, 0, %s' % (v(b0 + 1), v(b0 + 1)))
                a('v_add_f32 %s, 0x%08x, %s' % (v(b0 + 1), f32bits(1e-5), v(b0 + 1)))
                a('v_rsq_f32 %s, %s' % (v(RS + j), v(b0 + 1)))
        for (i, rr) in irs:
            bb = B + (i*2 + rr)*4
            for e in range(4):
                a('v_lshlrev_b32 %s, 16, %s' % (v(T + 2*e), v(bb + e)))
                a('v_and_b32 %s, 0xffff0000, %s' % (v(T + 2*e + 1), v(bb + e)))
            for (i2, j, rr2) in units:
                if (i2, rr2) != (i, rr): continue
                ac = x.ACC + (i*x.NT + j)*16 + 8*rr
                for e in range(8):
                    if FOLD:
                        cs = CSR + irs.index((i, rr))*8 + e
                        a('v_fma_f32 %s, -%s, %s, %s' % (v(ac + e), v(MU + j), v(cs), v(ac + e)))
                        a('v_fma_f32 %s, %s, %s, %s' % (v(ac + e), v(ac + e), v(RS + j), v(T + e)))
                    else:
                        a('v_add_f32 %s, %s, %s' % (v(ac + e), v(ac + e), v(T + e)))
                tmp = [T + 8, T + 9, T + 10, T + 11]
                for e0 in range(0, 8, 4):
                    es = list(range(e0, e0 + 4))
                    for n_, e in enumerate(es): a('v_mul_f32 %s, %s, %s' % (v(tmp[n_]), v(ac + e), v(ac + e)))
                    for n_, e in enumerate(es): a('v_fmaak_f32 %s, v6, %s, 0x%08x' % (v(tmp[n_]), v(tmp[n_]), f32bits(k1)))
                    for n_, e in enumerate(es): a('v_mul_f32 %s, %s, %s' % (v(tmp[n_]), v(tmp[n_]), v(ac + e)))
                    for n_, e in enumerate(es): a('v_exp_f32 %s, %s' % (v(tmp[n_]), v(tmp[n_])))
                    for n_, e in enumerate(es): a('v_add_f32 %s, 1.0, %s' % (v(tmp[n_]), v(tmp[n_])))
                    for n_, e in enumerate(es): a('v_rcp_f32 %s, %s' % (v(tmp[n_]), v(tmp[n_])))
                    for n_, e in enumerate(es): a('v_mul_f32 %s, %s, %s' % (v(ac + e), v(ac + e), v(tmp[n_])))
                to = T + 12 if cnt % 2 == 0 else B + 12
                to = T + 12
                cnt += 1
                for q in range(4):
                    a('v_cvt_pk_bf16_f32 %s, %s, %s' % (v(ac + q), v(ac + 2*q), v(ac + 2*q + 1)))
                a('s_mov_b32 s60, %d' % ((4*i + 2*rr)*2048 + j*512))
                a('buffer_store_dwordx4 %s, v4, s[36:39], s60 offen' % v(ac, 4))
    def idx_wait(a, d, l):
        a('s_lshr_b32 s88, s21, 3')
        a('s_add_u32 s88, s88, %d' % F4)
        a('v_add_u32 %s, s88, %s' % (v(d), v(l)))
    c.nwait = 32; c.idx_wait = idx_wait; c.sig = F5; c.fst = 11
    c.loadargs = loadargs; c.decode = decode; c.epi = epi
    return c

def cfg_ffn2():
    c = G(); c.kidx = 5; c.name = 'ffn2_kernel'; c.BM = 160; c.BN = 32; c.NK = 27; c.NSTG = 6; c.wm = 5; c.wn = 1; c.wk = 1; c.NWL = 8
    c.vgpr = 128; c.W_ka = KA_W2; c.W_pitch = 1280; c.W_bytes = 1728*640*2; c.X_ws = WS_G; c.X_nc = 216; c.grid = 256; c.pi = True
    def loadargs(a):
        a('s_load_dwordx2 s[14:15], s[0:1], %d' % KA_B2)
        a('s_load_dwordx2 s[16:17], s[0:1], %d' % KA_OUT)
    def decode(a):
        a('s_and_b32 s21, s2, 7'); a('s_lshl_b32 s21, s21, 3')
        a('s_lshr_b32 s20, s2, 3')
        a('s_lshr_b32 s22, s20, 2')
        a('s_add_u32 s21, s21, s22'); a('s_lshl_b32 s21, s21, 5')
        a('s_and_b32 s20, s20, 3'); a('s_mul_i32 s20, s20, 160')
        a('s_mov_b32 s22, 0')
    def epi(a, x):
        srd(a, 36, 16, 17, 2048*640*2)
        srd(a, 40, 14, 15, 640*2)
        srd(a, 44, 12, 13, 2048*640*2, WS_H)
        a('s_lshl_b32 s57, s26, 5')
        a('s_add_u32 s57, s57, s20')
        a('v_lshrrev_b32 v4, 5, v1')
        a('v_lshlrev_b32 v5, 4, v4')
        a('s_lshl_b32 s58, s57, 1')
        B = x.FR
        rrs = sorted(set((qq % 4)//2 for qq in x.quads))
        for rr in rrs:
            a('buffer_load_dwordx4 %s, v5, s[40:43], s58 offen offset:%d' % (v(B + rr*4, 4), 32*rr))
        a('s_lshr_b32 s59, s21, 7'); a('s_mul_i32 s59, s59, 80')
        a('s_lshr_b32 s60, s57, 3'); a('s_add_u32 s59, s59, s60'); a('s_lshl_b32 s59, s59, 11')
        a('s_and_b32 s60, s21, 127'); a('s_lshl_b32 s60, s60, 4'); a('s_add_u32 s59, s59, s60')
        a('v_lshlrev_b32 v6, 11, v4')
        a('v_and_b32 v7, 31, v1'); a('v_lshlrev_b32 v5, 4, v7')
        a('v_add_u32 v6, v6, v5')
        for rr in rrs:
            a('s_add_u32 s60, s59, %d' % (rr*4096))
            a('buffer_load_dwordx4 %s, v6, s[44:47], s60 offen' % v(B + 8 + rr*4, 4))
        a('v_add_u32 v7, s21, v7')
        a('v_mul_u32_u24 v7, 1280, v7')
        a('v_lshlrev_b32 v4, 4, v4')
        a('v_add_u32 v7, v7, v4')
        a('s_waitcnt vmcnt(0)')
        T = 96
        for rr in rrs:
            ac = x.ACC + 8*rr
            for e in range(4):
                a('v_lshlrev_b32 %s, 16, %s' % (v(T), v(B + rr*4 + e)))
                a('v_and_b32 %s, 0xffff0000, %s' % (v(T + 1), v(B + rr*4 + e)))
                a('v_add_f32 %s, %s, %s' % (v(ac + 2*e), v(ac + 2*e), v(T)))
                a('v_add_f32 %s, %s, %s' % (v(ac + 2*e + 1), v(ac + 2*e + 1), v(T + 1)))
            for q in range(4):
                a('v_cvt_pk_bf16_f32 %s, %s, %s' % (v(T + 4 + q), v(ac + 2*q), v(ac + 2*q + 1)))
            for e in range(4):
                a('v_lshlrev_b32 %s, 16, %s' % (v(T), v(T + 4 + e)))
                a('v_and_b32 %s, 0xffff0000, %s' % (v(T + 1), v(T + 4 + e)))
                a('v_lshlrev_b32 %s, 16, %s' % (v(T + 2), v(B + 8 + rr*4 + e)))
                a('v_and_b32 %s, 0xffff0000, %s' % (v(T + 3), v(B + 8 + rr*4 + e)))
                a('v_add_f32 %s, %s, %s' % (v(T), v(T), v(T + 2)))
                a('v_add_f32 %s, %s, %s' % (v(T + 1), v(T + 1), v(T + 3)))
                a('v_cvt_pk_bf16_f32 %s, %s, %s' % (v(T + 8 + 4*rr + e), v(T), v(T + 1)))
            a('buffer_store_dwordx4 %s, v7, s[36:39], s58 offen offset:%d' % (v(T + 8 + 4*rr, 4), 32*rr))
    def idx_wait(a, d, l):
        a('s_lshr_b32 s88, s21, 8')
        a('s_add_u32 s88, s88, %d' % F5)
        a('v_lshlrev_b32 %s, 3, %s' % (v(d), v(l)))
        a('v_add_u32 %s, s88, %s' % (v(d), v(d)))
    c.nwait = 27; c.idx_wait = idx_wait; c.sig = None; c.fst = 13
    c.loadargs = loadargs; c.decode = decode; c.epi = epi
    return c

def gen_ln2(a):
    name = 'ln2_kernel'
    if not FZ.on:
        kernel_header(a, name)
        a('s_cmp_ge_u32 s2, 256')
        a('s_cbranch_scc1 L_ln_end')
    a('s_load_dwordx2 s[6:7], s[0:1], %d' % KA_X)
    a('s_load_dwordx2 s[12:13], s[0:1], %d' % KA_WS)
    a('v_lshrrev_b32 v2, 6, v0')
    a('v_and_b32 v1, 63, v0')
    a('v_readfirstlane_b32 s25, v2')
    a('s_waitcnt lgkmcnt(0)')
    srd(a, 28, 12, 13, 4*2048*640*4, WS_PART)
    srd(a, 32, 6, 7, 2048*640*2)
    srd(a, 36, 12, 13, 2048*640*2, WS_H)
    srd(a, 40, 12, 13, 2048*640*2, WS_HN)
    def idx_wait(a, d, l):
        a('s_lshr_b32 s88, s2, 4')
        a('s_and_b32 s89, s88, 7'); a('s_lshl_b32 s89, s89, 5')
        a('s_lshr_b32 s88, s88, 3'); a('s_lshl_b32 s88, s88, 2')
        a('s_add_u32 s88, s88, s89'); a('s_add_u32 s88, s88, %d' % F3)
        a('v_lshrrev_b32 %s, 2, %s' % (v(d), v(l)))
        a('v_lshlrev_b32 %s, 3, %s' % (v(d), v(d)))
        a('v_and_b32 %s, 3, %s' % (v(d + 2), v(l)))
        a('v_add_u32 %s, %s, %s' % (v(d), v(d), v(d + 2)))
        a('v_add_u32 %s, s88, %s' % (v(d), v(d)))
    fz_wait(a, 16, idx_wait, tmp=120)
    fz_stamp(a, 9)
    if FZ.on:
        a('s_cmp_lt_u32 s25, 4')
        a('s_cbranch_scc0 L_ln_idle')
    a('s_lshr_b32 s20, s2, 4')
    a('s_and_b32 s21, s2, 15'); a('s_lshl_b32 s21, s21, 3')
    a('v_and_b32 v3, 7, v1'); a('v_lshrrev_b32 v4, 3, v1')
    a('s_mul_i32 s22, s25, 40')
    a('v_add_u32 v4, s22, v4')
    a('v_add_u32 v5, s21, v3')
    a('v_lshlrev_b32 v6, 11, v4'); a('v_lshlrev_b32 v7, 4, v5'); a('v_add_u32 v6, v6, v7')
    a('s_mul_i32 s23, s20, %d' % (160*2048))
    D = 16
    for sk in range(4):
        for u in range(5):
            a('s_add_u32 s54, s23, %d' % (sk*16*160*2048 + u*8*2048))
            a('buffer_load_dwordx4 %s, v6, s[28:31], s54 offen' % v(D + (sk*5 + u)*4, 4))
    a('s_lshl_b32 s24, s2, 3')
    a('v_add_u32 v8, s24, v3'); a('v_mul_u32_u24 v8, 1280, v8'); a('v_lshlrev_b32 v9, 3, v4'); a('v_add_u32 v8, v8, v9')
    XR = 96
    for u in range(5):
        a('buffer_load_dwordx2 %s, v8, s[32:35], 0 offen offset:%d' % (v(XR + 2*u, 2), u*64))
    a('s_waitcnt vmcnt(0)')
    for u in range(5):
        for e in range(4):
            r = D + u*4 + e
            a('v_add_f32 %s, %s, %s' % (v(r), v(r), v(r + 20)))
            a('v_add_f32 %s, %s, %s' % (v(r + 40), v(r + 40), v(r + 60)))
            a('v_add_f32 %s, %s, %s' % (v(r), v(r), v(r + 40)))
    H = 40
    for u in range(5):
        for p in range(2):
            r = D + u*4 + 2*p
            a('v_cvt_pk_bf16_f32 v110, %s, %s' % (v(r), v(r + 1)))
            a('v_lshlrev_b32 v111, 16, v110'); a('v_and_b32 v112, 0xffff0000, v110')
            a('v_lshlrev_b32 v113, 16, %s' % v(XR + 2*u + p)); a('v_and_b32 v114, 0xffff0000, %s' % v(XR + 2*u + p))
            a('v_add_f32 v111, v111, v113'); a('v_add_f32 v112, v112, v114')
            a('v_cvt_pk_bf16_f32 %s, v111, v112' % v(H + 2*u + p))
            a('v_lshlrev_b32 %s, 16, %s' % (v(r), v(H + 2*u + p)))
            a('v_and_b32 %s, 0xffff0000, %s' % (v(r + 1), v(H + 2*u + p)))
    a('v_lshrrev_b32 v9, 1, v4'); a('v_lshlrev_b32 v9, 11, v9'); a('v_and_b32 v10, 1, v4'); a('v_lshlrev_b32 v10, 3, v10')
    a('v_add_u32 v9, v9, v10'); a('v_add_u32 v9, v9, v7')
    a('s_mul_i32 s26, s20, %d' % (80*2048))
    for u in range(5):
        a('s_add_u32 s54, s26, %d' % (u*4*2048))
        a('buffer_store_dwordx2 %s, v9, s[36:39], s54 offen' % v(H + 2*u, 2))
    def red8(r, tmp):
        a('v_add_f32_dpp %s, %s, %s row_ror:8 row_mask:0xf bank_mask:0xf' % (v(r), v(r), v(r)))
        a('v_mov_b32 %s, %s' % (v(tmp), v(r))); a('v_permlane16_swap_b32 %s, %s' % (v(r), v(tmp))); a('v_add_f32 %s, %s, %s' % (v(r), v(r), v(tmp)))
        a('v_mov_b32 %s, %s' % (v(tmp), v(r))); a('v_permlane32_swap_b32 %s, %s' % (v(r), v(tmp))); a('v_add_f32 %s, %s, %s' % (v(r), v(r), v(tmp)))
    def xwave(r, off):
        a('s_lshl_b32 s27, s25, 5')
        a('v_lshlrev_b32 v11, 2, v3'); a('v_add_u32 v12, s27, v11')
        a('ds_write_b32 v12, %s offset:%d' % (v(r), off))
        a('s_waitcnt lgkmcnt(0)'); a('s_barrier')
        for k in range(4):
            a('ds_read_b32 %s, v11 offset:%d' % (v(116 + k), off + 32*k))
        a('s_waitcnt lgkmcnt(0)')
        a('v_add_f32 v116, v116, v117'); a('v_add_f32 v118, v118, v119'); a('v_add_f32 %s, v116, v118' % v(r))
    a('v_add_f32 v110, %s, %s' % (v(D), v(D + 1)))
    for e in range(2, 20): a('v_add_f32 v110, v110, %s' % v(D + e))
    red8(110, 111); xwave(110, 0)
    a('v_mul_f32 v110, 0x%08x, v110' % f32bits(1.0/640))
    for e in range(20): a('v_sub_f32 %s, %s, v110' % (v(D + e), v(D + e)))
    a('v_mul_f32 v110, %s, %s' % (v(D), v(D)))
    for e in range(1, 20): a('v_fmac_f32 v110, %s, %s' % (v(D + e), v(D + e)))
    red8(110, 111); xwave(110, 256)
    a('v_mov_b32 v111, 0x%08x' % f32bits(1e-5))
    a('v_fmac_f32 v111, 0x%08x, v110' % f32bits(1.0/640))
    a('v_rsq_f32 v111, v111')
    for e in range(20): a('v_mul_f32 %s, %s, v111' % (v(D + e), v(D + e)))
    for u in range(5):
        for p in range(2):
            a('v_cvt_pk_bf16_f32 %s, %s, %s' % (v(60 + 2*u + p), v(D + u*4 + 2*p), v(D + u*4 + 2*p + 1)))
        a('s_add_u32 s54, s26, %d' % (u*4*2048))
        a('buffer_store_dwordx2 %s, v9, s[40:43], s54 offen' % v(60 + 2*u, 2))
    if FZ.on:
        a('s_branch L_ln_sig')
        a.label('L_ln_idle')
        a('s_barrier'); a('s_barrier')
        a.label('L_ln_sig')
        fz_signal(a, F4)
        fz_stamp(a, 10)
    a.label('L_ln_end')
    if not FZ.on: a('s_endpgm')
    return name, 128, (256, 256, 1024)
```

```python
from asmlib import *
from common import *
import os
FOLD = bool(os.environ.get('FOLD'))

def gen_kv(a):
    name = 'kv_kernel'
    if not FZ.on:
        kernel_header(a, name)
        a('s_cmp_ge_u32 s2, 256')
        a('s_cbranch_scc1 L_kv_end')
    a('s_load_dwordx2 s[4:5], s[0:1], %d' % KA_CKV)
    a('s_load_dwordx4 s[8:11], s[0:1], %d' % KA_WUK)
    a('s_load_dwordx2 s[6:7], s[0:1], %d' % KA_X)
    a('s_load_dwordx2 s[12:13], s[0:1], %d' % KA_WS)
    a('s_load_dwordx2 s[62:63], s[0:1], %d' % KA_W1)
    stamp(a, 0)
    rtstamp(a, 8)
    a('s_and_b32 s20, s2, 7')
    a('s_lshr_b32 s21, s2, 3')
    a('s_and_b32 s22, s21, 7')
    a('s_lshr_b32 s21, s21, 3')
    a('s_lshl_b32 s20, s20, 2')
    a('s_add_u32 s20, s20, s21')
    a('s_lshr_b32 s23, s20, 4')
    a('s_and_b32 s24, s20, 15')
    a('v_lshrrev_b32 v1, 6, v0')
    a('v_and_b32 v2, 63, v0')
    a('v_readfirstlane_b32 s25, v1')
    a('s_waitcnt lgkmcnt(0)')
    a('s_cmp_eq_u32 s23, 0')
    a('s_cselect_b32 s26, s8, s10')
    a('s_cselect_b32 s27, s9, s11')
    srd(a, 28, 26, 27, 512*4096*2)
    srd(a, 32, 4, 5, 2048*512*2)
    srd(a, 36, 12, 13, 32*1024*1024, WS_KV)
    srd(a, 40, 6, 7, 2048*640*2)
    srd(a, 44, 12, 13, 2048*640*2, WS_XN)
    a('s_lshl_b32 s48, s2, 3')
    a('s_add_u32 s48, s48, s25')
    a('s_mul_i32 s49, s48, 1280')
    a('v_lshlrev_b32 v3, 4, v2')
    a('v_mov_b32 v20, 0'); a('v_mov_b32 v21, 0'); a('v_mov_b32 v22, 0'); a('v_mov_b32 v23, 0')
    a('buffer_load_dwordx4 v[16:19], v3, s[40:43], s49 offen')
    a('v_add_u32 v4, 1024, v3')
    a('v_cmp_gt_u32 vcc, 16, v2')
    a('v_mov_b32 v5, 0x7fffffff')
    a('v_cndmask_b32 v4, v5, v4, vcc')
    a('buffer_load_dwordx4 v[20:23], v4, s[40:43], s49 offen')
    if FOLD:
        a('v_mul_u32_u24 v24, 3456, v0')
        a('s_lshl_b32 s61, s2, 4')
        srd(a, 64, 62, 63, 640*1728*2)
        a('s_cmp_lt_u32 s2, 216')
        a('s_cbranch_scc0 L_kv_nocs0')
        a('buffer_load_dwordx4 v[112:115], v24, s[64:67], s61 offen')
        a('v_add_u32 v25, %d, v24' % (512*3456))
        a('buffer_load_dwordx4 v[116:119], v25, s[64:67], s61 offen')
        a.label('L_kv_nocs0')
    a('s_lshl_b32 s50, s25, 1')
    a('v_lshrrev_b32 v7, 5, v2')
    a('v_add_u32 v7, s50, v7')
    a('v_and_b32 v8, 3, v7')
    a('v_lshlrev_b32 v8, 2, v8')
    a('v_and_b32 v9, 31, v2')
    a('v_xor_b32 v8, v8, v9')
    a('v_lshlrev_b32 v8, 4, v8')
    a('v_lshlrev_b32 v7, 13, v7')
    a('v_add_u32 v6, v7, v8')
    a('s_lshl_b32 s50, s25, 3')
    a('v_lshrrev_b32 v7, 3, v2')
    a('v_add_u32 v7, s50, v7')
    a('v_lshrrev_b32 v8, 1, v7')
    a('v_and_b32 v8, 7, v8')
    a('v_and_b32 v9, 7, v2')
    a('v_xor_b32 v8, v8, v9')
    a('v_lshlrev_b32 v8, 4, v8')
    a('v_lshlrev_b32 v7, 10, v7')
    a('v_add_u32 v10, v7, v8')
    a('s_lshl_b32 s51, s24, 9')
    a('s_lshl_b32 s52, s22, 18')
    a('s_lshl_b32 s53, s25, 10')
    def dma(st):
        buf = (st & 1) * 65536
        L = []
        for j in range(4):
            L.append('s_add_u32 m0, s53, %d' % (buf + j*8192))
            L.append('s_add_u32 s54, s51, %d' % (st*64*8192 + j*16*8192))
            L.append('buffer_load_dwordx4 v6, s[28:31], s54 offen lds')
        for j in range(4):
            L.append('s_add_u32 m0, s53, %d' % (buf + 32768 + j*8192))
            L.append('s_add_u32 s54, s52, %d' % (j*64*1024 + st*128))
            L.append('buffer_load_dwordx4 v10, s[32:35], s54 offen lds')
        return L
    for x in dma(0): a(x)
    for x in dma(1): a(x)
    if not os.environ.get('NOPF') and not STAMPS:
        prefetch_arrays(a, [(KA_WQ, 640*4096*2)], 'kv', 60, 61, 2)
    a('v_and_b32 v7, 3, v2')
    a('v_and_b32 v8, 1, v7')
    a('v_lshlrev_b32 v8, 1, v8')
    a('v_lshrrev_b32 v9, 1, v7')
    a('v_or_b32 v8, v8, v9')
    a('s_cmp_eq_u32 s23, 0')
    a('s_cselect_b64 s[56:57], -1, 0')
    a('v_cndmask_b32 v7, v7, v8, s[56:57]')
    a('v_lshrrev_b32 v8, 1, v7')
    a('v_and_b32 v7, 1, v7')
    a('v_lshlrev_b32 v7, 3, v7')
    a('v_lshrrev_b32 v9, 4, v2')
    a('v_and_b32 v9, 1, v9')
    a('v_lshlrev_b32 v9, 1, v9')
    a('v_add_u32 v8, v8, v9')
    a('s_and_b32 s55, s25, 3')
    a('s_lshl_b32 s55, s55, 3')
    a('v_add_u32 v8, s55, v8')
    a('v_lshrrev_b32 v9, 2, v2')
    a('v_and_b32 v9, 3, v9')
    a('v_lshlrev_b32 v11, 2, v9')
    a('v_lshrrev_b32 v12, 5, v2')
    a('v_lshlrev_b32 v12, 3, v12')
    a('v_add_u32 v12, v12, v9')
    a('v_lshlrev_b32 v12, 9, v12')
    a('v_add_u32 v12, v12, v7')
    WA = 24
    for i in range(2):
        a('v_add_u32 v13, %d, v8' % (4*i))
        a('v_xor_b32 v13, v13, v11')
        a('v_lshlrev_b32 v13, 4, v13')
        a('v_add_u32 %s, v12, v13' % v(WA + i))
        a('v_add_u32 %s, 0x10000, %s' % (v(WA + 2 + i), v(WA + i)))
    a('v_and_b32 v7, 31, v2')
    a('v_and_b32 v8, 0x13, v7')
    a('v_and_b32 v9, 4, v7')
    a('v_lshlrev_b32 v9, 1, v9')
    a('v_or_b32 v8, v8, v9')
    a('v_and_b32 v9, 8, v7')
    a('v_lshrrev_b32 v9, 1, v9')
    a('v_or_b32 v8, v8, v9')
    a('v_cndmask_b32 v7, v8, v7, s[56:57]')
    a('v_lshrrev_b32 v8, 1, v7')
    a('v_and_b32 v8, 7, v8')
    a('v_lshrrev_b32 v9, 5, v2')
    a('s_lshr_b32 s55, s25, 2')
    a('s_lshl_b32 s55, s55, 14')
    a('s_add_u32 s55, s55, 32768')
    a('v_lshlrev_b32 v7, 7, v7')
    a('v_add_u32 v7, s55, v7')
    XA = 28
    for kk in range(4):
        a('v_add_u32 v13, %d, v9' % (2*kk))
        a('v_xor_b32 v13, v13, v8')
        a('v_lshlrev_b32 v13, 4, v13')
        a('v_add_u32 %s, v7, v13' % v(XA + kk))
        a('v_add_u32 %s, 0x10000, %s' % (v(XA + 4 + kk), v(XA + kk)))
    ACC = 128
    FR = 64
    for r in range(128):
        a('v_mov_b32 %s, 0' % v(ACC + r))
    def reads(st, kk, fs):
        b = st & 1
        L = []
        base = FR + 24*fs
        for i in range(2):
            for T in range(2):
                L.append('ds_read_b64_tr_b16 %s, %s offset:%d' % (v(base + 4*i + 2*T, 2), v(WA + 2*b + i), kk*8192 + T*2048))
        for j in range(4):
            L.append('ds_read_b128 %s, %s offset:%d' % (v(base + 8 + 4*j, 4), v(XA + 4*b + kk), j*4096))
        return [L[0], L[1], L[4], L[2], L[3], L[5], L[6], L[7]]
    def mfmas(fs, mat):
        base = FR + 24*fs
        L = []
        for j in range(4):
            for i in range(2):
                acc = v(ACC + (i*4 + j)*16, 16)
                wf = v(base + 4*i, 4); xf = v(base + 8 + 4*j, 4)
                if mat == 0:
                    L.append('v_mfma_f32_32x32x16_bf16 %s, %s, %s, %s' % (acc, wf, xf, acc))
                else:
                    L.append('v_mfma_f32_32x32x16_bf16 %s, %s, %s, %s' % (acc, xf, wf, acc))
        return L
    def ln_block():
        a('v_cmp_gt_u32 vcc, 16, v2')
        a('v_mov_b32 v55, 0')
        a('v_cndmask_b32 v55, v55, 1.0, vcc')
        layernorm_row(a, 16, True, 36, None)
        a('s_lshr_b32 s55, s48, 7')
        a('s_mul_i32 s55, s55, %d' % (80*128*16))
        a('s_and_b32 s58, s48, 127')
        a('s_lshl_b32 s58, s58, 4')
        a('s_add_u32 s55, s55, s58')
        a('v_lshlrev_b32 v7, 11, v2')
        a('buffer_store_dwordx4 v[16:19], v7, s[44:47], s55 offen')
        a('v_add_u32 v8, 0x20000, v7')
        a('v_mov_b32 v5, 0x7fffffff')
        a('v_cndmask_b32 v8, v5, v8, vcc')
        a('buffer_store_dwordx4 v[20:23], v8, s[44:47], s55 offen')
    a('s_cmp_eq_u32 s23, 0')
    a('s_cbranch_scc0 L_kv_vpath')
    NST = 8
    for mat in range(2):
        if mat == 1:
            a.label('L_kv_vpath')
        stamp(a, 1)
        a('s_waitcnt vmcnt(8)')
        a('s_barrier')
        stamp(a, 2)
        fz_nonce_finish(a)
        for x in reads(0, 0, 0): a(x)
        for st in range(NST):
            for kk in range(4):
                fs = kk & 1
                if kk < 3:
                    a('s_waitcnt lgkmcnt(0)')
                    for x in interleave(mfmas(fs, mat), reads(st, kk + 1, fs ^ 1), per=2): a(x)
                    if FZ.on and st == 1 and kk == 0: ln_block()
                else:
                    if st + 1 < NST:
                        a('s_waitcnt vmcnt(0) lgkmcnt(0)')
                        a('s_barrier')
                        if st == 1: fz_flag(a, F1X)
                        fill = []
                        if st + 2 < NST: fill += dma(st + 2)
                        rd = reads(st + 1, 0, fs ^ 1)
                        for x in interleave(mfmas(fs, mat), rd + fill, per=4): a(x)
                    else:
                        a('s_waitcnt lgkmcnt(0)')
                        for x in mfmas(fs, mat): a(x)
        stamp(a, 3)
        a('s_lshr_b32 s55, s25, 1')
        a('s_and_b32 s55, s55, 1')
        a('s_lshl_b32 s58, s24, 1')
        a('s_add_u32 s58, s58, s55')
        a('s_lshl_b32 s58, s58, 5')
        a('s_lshl_b32 s59, s22, 2')
        a('s_add_u32 s58, s58, s59')
        a('s_lshr_b32 s59, s25, 2')
        a('s_lshl_b32 s59, s59, 1')
        a('s_add_u32 s58, s58, s59')
        a('s_lshl_b32 s58, s58, 15')
        a('s_and_b32 s59, s25, 1')
        a('v_and_b32 v7, 31, v2')
        a('v_lshrrev_b32 v8, 5, v2')
        a('v_lshlrev_b32 v7, 4, v7')
        if mat == 0:
            a('s_lshl_b32 s59, s59, 13')
            a('v_lshlrev_b32 v8, 10, v8')
        else:
            a('s_lshl_b32 s59, s59, 10')
            a('s_add_u32 s59, s59, 16384')
            a('v_lshlrev_b32 v8, 11, v8')
        a('v_add_u32 v7, v7, v8')
        a('s_add_u32 s58, s58, s59')
        a('v_add_u32 v7, s58, v7')
        if FZ.on:
            a('v_mov_b32 v47, v7')
            a('s_mov_b32 s74, s23')
            for n in range(63, -1, -1):
                a('v_cvt_pk_bf16_f32 %s, %s, %s' % (v(192 + n), v(128 + 2*n), v(128 + 2*n + 1)))
        else:
            t = 36
            cnt = 0
            for j in range(4):
                for i in range(2):
                    accb = ACC + (i*4 + j)*16
                    for rr in range(2):
                        tb_ = t + (cnt % 4) * 4; cnt += 1
                        for q in range(4):
                            a('v_cvt_pk_bf16_f32 %s, %s, %s' % (v(tb_ + q), v(accb + 8*rr + 2*q), v(accb + 8*rr + 2*q + 1)))
                        if mat == 0:
                            off = (j >> 1)*32768 + (4*i + 2*rr)*1024 + (j & 1)*512
                        else:
                            off = (j >> 1)*32768 + (4*(j & 1) + 2*rr)*2048 + i*512
                        a('s_add_u32 s60, 0, %d' % off if False else 's_mov_b32 s60, %d' % off)
                        a('buffer_store_dwordx4 %s, v7, s[36:39], s60 offen' % v(tb_, 4))
        if mat == 0:
            a('s_branch L_kv_ln')
    a.label('L_kv_ln')
    if FOLD:
        a('s_cmp_lt_u32 s2, 216')
        a('s_cbranch_scc0 L_kv_nocs')
        srd(a, 68, 12, 13, 1728*4, WS_CS)
        for e in range(4):
            a('v_lshlrev_b32 %s, 16, %s' % (v(36 + 2*e), v(112 + e)))
            a('v_and_b32 %s, 0xffff0000, %s' % (v(37 + 2*e), v(112 + e)))
            a('v_lshlrev_b32 v44, 16, %s' % v(116 + e))
            a('v_and_b32 v45, 0xffff0000, %s' % v(116 + e))
            a('v_add_f32 %s, %s, v44' % (v(36 + 2*e), v(36 + 2*e)))
            a('v_add_f32 %s, %s, v45' % (v(37 + 2*e), v(37 + 2*e)))
        for e in range(8):
            wave_sum(a, 36 + e, 44)
        a('s_barrier')
        a('s_lshl_b32 s61, s25, 5')
        a('v_mov_b32 v24, s61')
        a('ds_write_b128 v24, v[36:39]')
        a('ds_write_b128 v24, v[40:43] offset:16')
        a('s_waitcnt lgkmcnt(0)')
        a('s_barrier')
        a('v_lshlrev_b32 v24, 2, v2')
        for w in range(8):
            a('ds_read_b32 %s, v24 offset:%d' % (v(36 + w), 32*w))
        a('s_waitcnt lgkmcnt(0)')
        for w in range(1, 8):
            a('v_add_f32 v36, v36, %s' % v(36 + w))
        a('s_lshl_b32 s61, s2, 5')
        a('v_cmp_gt_u32 vcc, 8, v0')
        a('v_mov_b32 v25, 0x7fffffff')
        a('v_cndmask_b32 v24, v25, v24, vcc')
        a('buffer_store_dword v36, v24, s[68:71], s61 offen')
        a.label('L_kv_nocs')
    if not FZ.on: ln_block()
    stamp(a, 4)
    if STAMPS:
        a('s_waitcnt vmcnt(0)')
        stamp(a, 5)
        rtstamp(a, 9); stamp_flush(a, 0, 6)
    fz_stamp(a, 1)
    fz_stamp(a, 2)
    a.label('L_kv_end')
    if not FZ.on: a('s_endpgm')
    return name, 256, (256, 512, 131072)


def kv_pending_stores():
    L = []
    for j in range(4):
        for i in range(2):
            for rr in range(2):
                offK = (j >> 1)*32768 + (4*i + 2*rr)*1024 + (j & 1)*512
                offV = (j >> 1)*32768 + (4*(j & 1) + 2*rr)*2048 + i*512
                t = i*4 + j
                L.append(['s_cmp_eq_u32 s74, 0', 's_mov_b32 s61, %d' % offV, 's_cselect_b32 s60, %d, s61' % offK,
                          'buffer_store_dwordx4 %s, v47, s[36:39], s60 offen' % v(192 + t*8 + rr*4, 4)])
    return L
```

```python
import sys, os
sys.path.insert(0, os.path.dirname(os.path.abspath(__file__)))
from asmlib import *
from common import *
from kv import gen_kv
from attn import gen_attn
from gemm import *

def main():
    a = Asm()
    kernels = []
    FZ.on = not os.environ.get('NOFUSE')
    if FZ.on:
        fname = NAME + '_kernel'
        kernel_header(a, fname)
        a('s_cmp_ge_u32 s2, 256')
        a('s_cbranch_scc1 L_fz_end')
        fz_prologue(a)
    kernels.append(gen_kv(a))
    kernels.append(gen_attn(a))
    if FOLD:
        kernels.append(gen_gemm(a, cfg_oprojF()))
    else:
        kernels.append(gen_gemm(a, cfg_oproj()))
        kernels.append(gen_ln2(a))
    kernels.append(gen_gemm(a, cfg_ffn1()))
    kernels.append(gen_gemm(a, cfg_ffn2()))
    if FZ.on:
        a.label('L_fz_end')
        a('s_endpgm')
        kernels = [(fname, 256, (256, 512, 163840))]
        for i in a.ins:
            if i.kind == 'vmem' and i.op.startswith('buffer_load') and 'sc1' not in i.text:
                if i.text.rstrip().endswith(' lds'):
                    i.text = i.text.rstrip()[:-4] + ' sc1 lds'
                else:
                    i.text = i.text + ' sc1'
    if not os.environ.get('NOSC1'):
        for i in a.ins:
            if i.kind == 'vmem' and i.op.startswith('buffer_store') and 'sc1' not in i.text:
                i.text = i.text + ' sc1'
    a.fix_hazards()
    hdr = open(os.path.join(os.path.dirname(os.path.abspath(__file__)), 'header.txt')).read()
    out = hdr
    for (n, vg, (g, b, lds)) in kernels:
        if FZ.on and os.environ.get('PLAIN'):
            out += '; @launch grid=(%d,1,1) block=(%d,1,1) lds=%d\n' % (g, b, lds)
        else:
            out += '; @launch kernel=%s grid=(%d,1,1) block=(%d,1,1) lds=%d\n' % (n, g, b, lds)
    out += '.amdgcn_target "amdgcn-amd-amdhsa--gfx950"\n.text\n'
    out += a.text()
    out += '.section .rodata,"a"\n'
    for (n, vg, _) in kernels:
        out += kernel_desc(n, vg)
    path = sys.argv[1] if len(sys.argv) > 1 else 'cdna_kernels/%s.s' % NAME
    open(path, 'w').write(out)
    print('wrote', path, len(out), 'bytes')

if __name__ == '__main__':
    main()
```
